```python
import torch

def _softmax(x, axis=-1):
    return torch.softmax(x, dim=axis)
def _gelu(x):
    return torch.nn.functional.gelu(x, approximate="tanh")
def _silu(x):
    return torch.nn.functional.silu(x)
def _sigmoid(x):
    return torch.sigmoid(x)
def _layernorm(x, axis=-1, eps=1e-5):
    m = x.mean(dim=axis, keepdim=True)
    v = x.var(dim=axis, keepdim=True, unbiased=False)
    return (x - m) / torch.sqrt(v + eps)
def _scatter_add(tgt, idx, src, axis=0):
    return tgt.clone().index_add_(axis, idx, src)
def _segment_sum(src, seg, n):
    out = torch.zeros((n,) + src.shape[1:], dtype=src.dtype)
    return out.index_add_(0, seg, src)
def _pad(x, pw):
    flat = tuple(v for pair in reversed(pw) for v in pair)
    return torch.nn.functional.pad(x, flat)

kernel_name = 'standalone__weight_only_int_quip__decode'

def setup_inputs():

    _w = (lambda a: (lambda t: t.to(torch.bfloat16) if t.is_floating_point() else t)(torch.as_tensor(a)))
    B, S, D, F = 4, 1, 576, 4608
    G = 32 if 32 > 0 else D
    D = (D // G) * G
    ng = D // G
    bits = 4 if 4 > 0 else 4
    qmax = 1 << bits
    qw = torch.randint(0, qmax, (D, F)).to(torch.int32)
    U, _ = (lambda *_a, **_k: torch.linalg.qr(*[torch.as_tensor(_x).float() for _x in _a], **_k))((lambda *s: torch.randn(*s, dtype=torch.bfloat16) * 0.05)(D, D))
    V, _ = (lambda *_a, **_k: torch.linalg.qr(*[torch.as_tensor(_x).float() for _x in _a], **_k))((lambda *s: torch.randn(*s, dtype=torch.bfloat16) * 0.05)(F, F))
    return {
        "x": _w((lambda *s: torch.randn(*s, dtype=torch.bfloat16) * 0.05)(B, S, D)),
        "qw": _w(qw),
        "scales": _w(torch.abs((lambda *s: torch.randn(*s, dtype=torch.bfloat16) * 0.05)(ng, F)) * 0.02 + 0.005),
        "zeros": _w(torch.full((ng, F), qmax / 2.0, dtype=float)),
        "U": _w(U.to(float)),
        "V": _w(V.to(float)),
    }

def reference(x, qw, scales, zeros, U, V):
    B, S, D = x.shape
    ng, F = scales.shape
    G = D // ng
    s = (lambda x, n, axis: torch.repeat_interleave(x, n, dim=axis))(scales, G, axis=0)
    z = (lambda x, n, axis: torch.repeat_interleave(x, n, dim=axis))(zeros, G, axis=0)
    wq = ((lambda x, dt: x.to(dt))(qw, x.dtype) - z) * s
    xr = torch.einsum("bsd,de->bse", x, U)
    h  = torch.einsum("bse,ef->bsf", xr, wq)
    y  = torch.einsum("bsf,fg->bsg", h, V)
    return y
```

```python
import sys

HEADER = open('standalone__weight_only_int_quip__decode.s.ref').read().split('; Override launch')[0]

class A:
    def __init__(self):
        self.l = []
    def __call__(self, s):
        for line in s.strip('\n').split('\n'):
            self.l.append('    ' + line.strip())
    def label(self, s):
        self.l.append(s + ':')
    def raw(self, s):
        self.l.append(s)
    def text(self):
        return '\n'.join(self.l) + '\n'

def kernel_begin(a, name):
    a.raw(f'.globl {name}\n.p2align 8\n.type {name},@function\n{name}:')

def kd(name, vgpr, sgpr=102, accum=None):
    if accum is None:
        accum = (vgpr + 3) // 4 * 4
    return f'''.p2align 6
.amdhsa_kernel {name}
  .amdhsa_next_free_vgpr {vgpr}
  .amdhsa_next_free_sgpr {sgpr}
  .amdhsa_accum_offset {accum}
  .amdhsa_group_segment_fixed_size 0
  .amdhsa_kernarg_size 72
  .amdhsa_user_sgpr_count 2
  .amdhsa_user_sgpr_kernarg_segment_ptr 1
  .amdhsa_system_sgpr_workgroup_id_x 1
.end_amdhsa_kernel
'''

def srd(a, d, lo, nbytes):
    a(f'''s_mov_b32 s{d}, s{lo}
    s_and_b32 s{d+1}, s{lo+1}, 0xffff
    s_mov_b32 s{d+2}, {nbytes}
    s_mov_b32 s{d+3}, 0x00020000''')

XR_OFF = 0
H_OFF = 8192

def transpose(a, src, dst, sel_lo, sel_hi):
    for d in range(4):
        for p in range(4):
            a(f'v_perm_b32 v{dst+4*(2*d)+p}, v{src+4*(2*p+1)+d}, v{src+4*(2*p)+d}, s{sel_lo}')
            a(f'v_perm_b32 v{dst+4*(2*d+1)+p}, v{src+4*(2*p+1)+d}, v{src+4*(2*p)+d}, s{sel_hi}')

def gen():
    a = A()
    a.raw(HEADER.rstrip('\n'))
    a.raw('; @launch kernel=k1_kernel grid=(9,1,1) block=(576,1,1) lds=18432')
    a.raw('; @launch kernel=k2_kernel grid=(72,1,1) block=(576,1,1) lds=9216')
    a.raw('; @launch kernel=standalone__weight_only_int_quip__decode_kernel grid=(144,1,1) block=(768,1,1) lds=24576')
    a.raw('.amdgcn_target "amdgcn-amd-amdhsa--gfx950"\n.text')

    kernel_begin(a, 'k1_kernel')
    a('''s_cmp_ge_u32 s2, 9
    s_cbranch_scc1 K1_END
    s_load_dwordx16 s[4:19], s[0:1], 0
    s_load_dwordx2 s[20:21], s[0:1], 64
    v_lshrrev_b32 v1, 6, v0          ; wave
    v_and_b32 v2, 63, v0             ; lane
    v_lshrrev_b32 v3, 4, v2          ; kg
    v_bfe_u32 v4, v2, 3, 1           ; c
    v_and_b32 v5, 7, v2              ; n'
    v_lshlrev_b32 v6, 6, v1
    v_lshl_add_u32 v6, v4, 5, v6
    v_lshl_add_u32 v6, v3, 3, v6
    v_mul_u32_u24 v6, 1152, v6
    v_lshl_add_u32 v6, v5, 4, v6     ; U voffset
    ; A: b = l&3, c' = (l>>2)&1 ; x[b][64w+32c'+8kg]
    v_and_b32 v7, 3, v2
    v_mul_u32_u24 v7, 1152, v7
    v_bfe_u32 v8, v2, 2, 1
    v_lshlrev_b32 v9, 7, v1
    v_lshl_add_u32 v9, v8, 6, v9
    v_lshl_add_u32 v9, v3, 4, v9
    v_add_u32 v7, v7, v9             ; x voffset
    s_mov_b32 s40, 0x05040100
    s_mov_b32 s41, 0x07060302
    s_lshl_b32 s3, s2, 7
    s_waitcnt lgkmcnt(0)''')
    srd(a, 24, 4, 4 * 576 * 2)
    srd(a, 28, 12, 576 * 576 * 2)
    srd(a, 32, 20, 1 << 20)
    a('buffer_load_dwordx4 v[12:15], v7, s[24:27], 0 offen')
    for i in range(8):
        a(f'buffer_load_dwordx4 v[{16+4*i}:{19+4*i}], v6, s[28:31], s3 offen')
        if i < 7:
            a('s_add_u32 s3, s3, 1152')
    a('s_waitcnt vmcnt(0)')
    transpose(a, 16, 48, 40, 41)
    a('s_nop 1')
    for j in range(8):
        a(f'v_mfma_f32_16x16x32_bf16 v[{80+4*j}:{83+4*j}], v[12:15], v[{48+4*j}:{51+4*j}], 0')
    a('''v_lshl_add_u32 v10, v1, 1, v4
    v_lshlrev_b32 v10, 6, v10
    v_lshl_add_u32 v10, v5, 3, v10
    v_lshlrev_b32 v10, 4, v10
    v_cmp_eq_u32 vcc, v3, v4
    s_nop 7
    s_and_saveexec_b64 s[42:43], vcc''')
    for j in range(8):
        a(f'ds_write_b128 v10, v[{80+4*j}:{83+4*j}] offset:{16*j}')
    a('''s_mov_b64 exec, s[42:43]
    s_waitcnt lgkmcnt(0)
    s_barrier
    v_cmp_gt_u32 vcc, 256, v0
    s_and_saveexec_b64 s[42:43], vcc
    s_cbranch_execz K1_END
    v_lshlrev_b32 v10, 2, v0''')
    for p in range(18):
        a(f'ds_read_b32 v{16+p}, v10 offset:{p*1024}')
    a('s_waitcnt lgkmcnt(0)')
    for p in range(1, 18):
        a(f'v_add_f32 v16, v16, v{16+p}')
    a(f'''v_cvt_pk_bf16_f32 v16, v16, v16
    v_and_b32 v11, 3, v0
    v_mul_u32_u24 v11, 1152, v11
    v_lshrrev_b32 v12, 2, v0
    v_lshl_add_u32 v11, v12, 1, v11
    s_lshl_b32 s3, s2, 7
    buffer_store_short v16, v11, s[32:35], s3 offen offset:{XR_OFF}''')
    a.label('K1_END')
    a('s_endpgm')

    kernel_begin(a, 'k2_kernel')
    a('''s_cmp_ge_u32 s2, 72
    s_cbranch_scc1 K2_END
    s_load_dwordx16 s[4:19], s[0:1], 0
    s_load_dwordx2 s[20:21], s[0:1], 64
    v_lshrrev_b32 v1, 6, v0          ; wave
    v_and_b32 v2, 63, v0             ; lane
    v_lshrrev_b32 v3, 4, v2          ; kg
    v_and_b32 v5, 15, v2             ; n
    v_lshlrev_b32 v6, 6, v1
    v_lshl_add_u32 v6, v3, 3, v6
    v_mul_u32_u24 v6, 18432, v6
    v_lshl_add_u32 v6, v5, 4, v6
    v_mul_u32_u24 v8, 18432, v1
    v_lshl_add_u32 v8, v5, 3, v8
    v_and_b32 v7, 3, v2
    v_mul_u32_u24 v7, 1152, v7
    v_lshl_add_u32 v7, v1, 7, v7
    v_lshl_add_u32 v7, v3, 4, v7
    s_lshl_b32 s3, s2, 8
    s_lshl_b32 s44, s2, 7
    s_add_u32 s45, s44, 9216
    s_waitcnt lgkmcnt(0)''')
    srd(a, 24, 6, 576 * 4608 * 4)
    srd(a, 28, 8, 18 * 4608 * 2)
    srd(a, 36, 10, 18 * 4608 * 2)
    srd(a, 32, 20, 1 << 20)
    a(f'''buffer_load_dwordx4 v[12:15], v7, s[32:35], 0 offen offset:{XR_OFF}
    buffer_load_dwordx4 v[16:19], v7, s[32:35], 0 offen offset:{XR_OFF+64}
    buffer_load_dwordx2 v[20:21], v8, s[28:31], s44 offen
    buffer_load_dwordx2 v[22:23], v8, s[36:39], s44 offen
    buffer_load_dwordx2 v[24:25], v8, s[28:31], s45 offen
    buffer_load_dwordx2 v[26:27], v8, s[36:39], s45 offen''')
    Q = 32
    for s in range(2):
        for i in range(8):
            a(f'buffer_load_dwordx4 v[{Q+32*s+4*i}:{Q+32*s+4*i+3}], v6, s[24:27], s3 offen')
            if i < 7:
                a('s_add_u32 s3, s3, 18432')
            elif s == 0:
                a(f's_add_u32 s3, s3, {25*18432}')
    a('s_waitcnt vmcnt(0)')
    SC = 96
    W = 104
    ACC = 120
    for s in range(2):
        sreg = 20 + 4 * s
        zreg = 22 + 4 * s
        for j in range(4):
            if j % 2 == 0:
                a(f'v_lshlrev_b32 v{SC+j}, 16, v{sreg+j//2}')
                a(f'v_lshlrev_b32 v{SC+4+j}, 16, v{zreg+j//2}')
            else:
                a(f'v_and_b32 v{SC+j}, 0xffff0000, v{sreg+j//2}')
                a(f'v_and_b32 v{SC+4+j}, 0xffff0000, v{zreg+j//2}')
            a(f'v_mul_f32 v{SC+4+j}, v{SC+4+j}, v{SC+j}')
        for i in range(8):
            for j in range(4):
                r = Q + 32 * s + 4 * i + j
                a(f'v_cvt_f32_i32 v{r}, v{r}')
                a(f'v_fma_f32 v{r}, v{r}, v{SC+j}, -v{SC+4+j}')
        for j in range(4):
            for p in range(4):
                a(f'v_cvt_pk_bf16_f32 v{W+4*j+p}, v{Q+32*s+4*(2*p)+j}, v{Q+32*s+4*(2*p+1)+j}')
        a('s_nop 1')
        for j in range(4):
            c = '0' if s == 0 else f'v[{ACC+4*j}:{ACC+4*j+3}]'
            a(f'v_mfma_f32_16x16x32_bf16 v[{ACC+4*j}:{ACC+4*j+3}], v[{12+4*s}:{15+4*s}], v[{W+4*j}:{W+4*j+3}], {c}')
        a('s_nop 7')
    a('''v_lshlrev_b32 v10, 6, v1
    v_lshl_add_u32 v10, v5, 2, v10
    v_lshlrev_b32 v10, 4, v10
    v_cmp_eq_u32 vcc, 0, v3
    s_nop 7
    s_and_saveexec_b64 s[42:43], vcc''')
    for j in range(4):
        a(f'ds_write_b128 v10, v[{ACC+4*j}:{ACC+4*j+3}] offset:{16*j}')
    a('''s_mov_b64 exec, s[42:43]
    s_waitcnt lgkmcnt(0)
    s_barrier
    v_cmp_gt_u32 vcc, 256, v0
    s_and_saveexec_b64 s[42:43], vcc
    s_cbranch_execz K2_END
    v_lshlrev_b32 v10, 2, v0''')
    for p in range(9):
        a(f'ds_read_b32 v{16+p}, v10 offset:{p*1024}')
    a('s_waitcnt lgkmcnt(0)')
    for p in range(1, 9):
        a(f'v_add_f32 v16, v16, v{16+p}')
    a(f'''v_cvt_pk_bf16_f32 v16, v16, v16
    v_and_b32 v11, 3, v0
    v_mul_u32_u24 v11, 9216, v11
    v_lshrrev_b32 v12, 2, v0
    v_lshl_add_u32 v11, v12, 1, v11
    s_lshl_b32 s3, s2, 7
    s_add_u32 s3, s3, {H_OFF}
    buffer_store_short v16, v11, s[32:35], s3 offen''')
    a.label('K2_END')
    a('s_endpgm')

    name = 'standalone__weight_only_int_quip__decode_kernel'
    kernel_begin(a, name)
    a('''s_cmp_ge_u32 s2, 144
    s_cbranch_scc1 K3_END
    s_load_dwordx16 s[4:19], s[0:1], 0
    s_load_dwordx2 s[20:21], s[0:1], 64
    v_lshrrev_b32 v1, 6, v0          ; wave
    v_and_b32 v2, 63, v0             ; lane
    v_lshrrev_b32 v3, 4, v2          ; kg
    v_bfe_u32 v4, v2, 2, 2           ; c
    v_and_b32 v5, 3, v2              ; n' (also b)
    v_lshlrev_b32 v6, 7, v1
    v_lshl_add_u32 v6, v4, 5, v6
    v_lshl_add_u32 v6, v3, 3, v6
    v_lshlrev_b32 v7, 1, v6
    v_mul_u32_u24 v6, 9216, v6
    v_lshl_add_u32 v6, v5, 4, v6     ; V voffset
    v_mul_u32_u24 v8, 9216, v5
    v_add_u32 v7, v7, v8
    s_mov_b32 s40, 0x05040100
    s_mov_b32 s41, 0x07060302
    s_lshl_b32 s3, s2, 6
    s_waitcnt lgkmcnt(0)''')
    srd(a, 24, 14, 4608 * 4608 * 2)
    srd(a, 28, 16, 4 * 4608 * 2)
    srd(a, 32, 20, 1 << 20)
    a(f's_mov_b32 s44, {H_OFF}')
    for s in range(3):
        a(f'buffer_load_dwordx4 v[{12+4*s}:{15+4*s}], v7, s[32:35], s44 offen offset:{s*3072 if s < 2 else 0}')
        if s == 1:
            a(f's_add_u32 s44, s44, 6144')
    VB = 24
    for s in range(3):
        for i in range(8):
            a(f'buffer_load_dwordx4 v[{VB+32*s+4*i}:{VB+32*s+4*i+3}], v6, s[24:27], s3 offen')
            if i < 7:
                a('s_add_u32 s3, s3, 9216')
            elif s < 2:
                a(f's_add_u32 s3, s3, {(1536-7)*9216}')
    T = VB + 96
    ACC = VB
    for s in range(3):
        a(f's_waitcnt vmcnt({16-8*s})')
        transpose(a, VB + 32 * s, T, 40, 41)
        a('s_nop 1')
        for j in range(8):
            c = '0' if s == 0 else f'v[{ACC+4*j}:{ACC+4*j+3}]'
            a(f'v_mfma_f32_16x16x32_bf16 v[{ACC+4*j}:{ACC+4*j+3}], v[{12+4*s}:{15+4*s}], v[{T+4*j}:{T+4*j+3}], {c}')
    a('''v_lshl_add_u32 v10, v1, 2, v4
    v_lshlrev_b32 v10, 5, v10
    v_lshl_add_u32 v10, v5, 3, v10
    v_lshlrev_b32 v10, 4, v10
    v_cmp_eq_u32 vcc, v3, v4
    s_nop 7
    s_and_saveexec_b64 s[42:43], vcc''')
    for j in range(8):
        a(f'ds_write_b128 v10, v[{ACC+4*j}:{ACC+4*j+3}] offset:{16*j}')
    a('''s_mov_b64 exec, s[42:43]
    s_waitcnt lgkmcnt(0)
    s_barrier
    v_cmp_gt_u32 vcc, 128, v0
    s_and_saveexec_b64 s[42:43], vcc
    s_cbranch_execz K3_END
    v_lshlrev_b32 v10, 2, v0''')
    for p in range(48):
        a(f'ds_read_b32 v{16+p}, v10 offset:{p*512}')
        if p % 12 == 11:
            a('s_waitcnt lgkmcnt(0)')
    for p in range(1, 48):
        a(f'v_add_f32 v16, v16, v{16+p}')
    a(f'''v_cvt_pk_bf16_f32 v16, v16, v16
    v_and_b32 v11, 3, v0
    v_mul_u32_u24 v11, 9216, v11
    v_lshrrev_b32 v12, 2, v0
    v_lshl_add_u32 v11, v12, 1, v11
    s_lshl_b32 s3, s2, 6
    buffer_store_short v16, v11, s[28:31], s3 offen''')
    a.label('K3_END')
    a('s_endpgm')

    a.raw('.section .rodata,"a"')
    a.raw(kd('k1_kernel', 112))
    a.raw(kd('k2_kernel', 136))
    a.raw(kd(name, T + 32))
    return a.text()

if __name__ == '__main__':
    out = sys.argv[1] if len(sys.argv) > 1 else 'standalone__weight_only_int_quip__decode.s'
    open(out, 'w').write(gen())
```

```python
import sys
from gen_base import A, kernel_begin, kd, HEADER
NAME = 'standalone__weight_only_int_quip__decode_kernel'

XG = 4096
HG = 16384
YG = 131072
WS_BYTES = YG + 9 * 18 * 16384
STAMP = 128 << 20
NX, NH, NV = 18, 72, 162
VROW = 9216
QROW = 18432
TAGC = 0x9E3779B8
SPIN = 200000

class VM:
    def __init__(self, a):
        self.a = a
        self.q = []
    def issue(self, name, text):
        self.a(text)
        self.q.append(name)
    def wait(self, name):
        if name not in self.q:
            return
        idx = self.q.index(name)
        n = len(self.q) - 1 - idx
        assert n <= 63
        self.a(f's_waitcnt vmcnt({n})')
        self.q = self.q[idx + 1:]
    def wait_all(self):
        self.a('s_waitcnt vmcnt(0)')
        self.q = []

def srd(a, d, lo, nbytes):
    a(f'''s_mov_b32 s{d}, s{lo}
    s_and_b32 s{d+1}, s{lo+1}, 0xffff
    s_mov_b32 s{d+2}, {nbytes}
    s_mov_b32 s{d+3}, 0x00020000''')

def gen(D='4', ppos=26, stamps=False, vflags='nt', qflags='nt', uflags='', vdelay=0, cpf=True, noV=False, hlate=False):
    a = A()
    a.raw(HEADER.rstrip('\n'))
    a.raw(f'; @launch grid=({NX+NH+NV},1,1) block=(512,1,1) lds=36864')
    if stamps:
        a.raw('; stamps=7')
        a.raw(f'; roles={NX},{NH},{NV}')
    a.raw('.amdgcn_target "amdgcn-amd-amdhsa--gfx950"\n.text')
    kernel_begin(a, NAME)

    def stamp(i):
        if stamps:
            a(f's_memrealtime s[{80+2*i}:{81+2*i}]')
            a('s_waitcnt lgkmcnt(0)')
    def stamp_store(lbl):
        if stamps:
            a(f'''s_mov_b64 exec, 1
            s_mov_b32 s76, s20
            s_and_b32 s77, s21, 0xffff
            s_mov_b32 s78, 0x10000000
            s_mov_b32 s79, 0x00020000
            s_mul_i32 s75, s2, 56
            s_add_u32 s75, s75, {STAMP}
            v_mov_b32 v1, 0''')
            for i in range(7):
                a(f'''v_mov_b32 v2, s{80+2*i}
                v_mov_b32 v3, s{81+2*i}
                buffer_store_dwordx2 v[2:3], v1, s[76:79], s75 offen offset:{8*i}
                s_nop 1''')

    if stamps:
        a('s_memrealtime s[80:81]')
    a(f'''s_load_dwordx16 s[4:19], s[0:1], 0
    s_load_dwordx2 s[20:21], s[0:1], 64''')
    if cpf:
        a('''s_getpc_b64 s[64:65]
PC0:
        s_and_b32 s65, s65, 0xffff
        s_mov_b32 s66, CODE_END-PC0
        s_mov_b32 s67, 0x00020000
        v_lshlrev_b32 v1, 7, v0
        buffer_load_dword v255, v1, s[64:67], 0 offen''')
    a(f'''v_lshrrev_b32 v1, 6, v0          ; wave
    v_and_b32 v2, 63, v0             ; lane
    v_lshrrev_b32 v3, 4, v2          ; kg
    v_and_b32 v4, 15, v2             ; n / m
    s_mov_b32 s40, 0x05040100
    s_mov_b32 s41, 0x07060302
    s_mov_b32 s46, {SPIN}
    s_cmp_lt_u32 s2, {NX+NH}
    s_cbranch_scc1 ROLE_XH''')

    vm = VM(a)
    RING = 16
    dep = []
    for part in D.split(','):
        if 'x' in part:
            d, n = part.split('x')
            dep += [int(d)] * int(n)
        else:
            dep += [int(part)] * (32 - len(dep))
    dep = dep[:32]
    NR = max(dep) + 2
    assert RING + 4 * NR <= 64
    T = 64
    ACC = 192
    P = 224
    TW = 232
    AOP = 236
    a(f'''s_sub_u32 s3, s2, {NX+NH}        ; v
    s_cmp_ge_u32 s3, {NV}
    s_cbranch_scc1 END
    s_mul_hi_u32 s42, s3, {-(-(1<<32)//9)}   ; r = v / 9
    s_mul_i32 s43, s42, 9
    s_sub_u32 s43, s3, s43           ; c = v % 9
    v_lshrrev_b32 v5, 2, v1          ; rg
    v_and_b32 v6, 3, v1              ; cq
    v_lshlrev_b32 v7, 7, v5
    v_lshl_add_u32 v7, v3, 3, v7
    v_mul_u32_u24 v8, {VROW}, v7
    v_lshl_add_u32 v8, v6, 8, v8
    v_lshl_add_u32 v8, v4, 4, v8     ; V voffset
    s_mul_i32 s44, s42, {256*VROW}
    s_lshl_b32 s45, s43, 10
    s_add_u32 s44, s44, s45          ; V soffset
    s_waitcnt lgkmcnt(0)''')
    srd(a, 24, 14, 4608 * 4608 * 2)
    if noV:
        for i in range(1, 6):
            stamp(i)
        a('v_readfirstlane_b32 s59, v1\ns_cmp_lg_u32 s59, 0\ns_cbranch_scc1 END\ns_branch V_FIN')
    if vdelay:
        a(f's_sleep {vdelay}')
    state = {'row': 0}
    def vload(k):
        s, i = divmod(k, 8)
        row = 32 * s + i
        if row != state['row']:
            a(f's_add_u32 s44, s44, {(row - state["row"]) * VROW}')
            state['row'] = row
        r = RING + 4 * (k % NR)
        vm.issue(f'L{k}', f'buffer_load_dwordx4 v[{r}:{r+3}], v8, s[24:27], s44 offen {vflags}')
    def poll_issue(track=True):
        ops = [('PT', f'buffer_load_dword v{TW}, v10, s[36:39], 0 offen sc1'),
               ('P0', f'buffer_load_dwordx4 v[{P}:{P+3}], v9, s[28:31], s47 offen sc1'),
               ('P1', f'buffer_load_dwordx4 v[{P+4}:{P+7}], v9, s[28:31], s47 offen offset:16 sc1')]
        for n, t in ops:
            if track:
                vm.issue(n, t)
            else:
                a(t)
    def perms(q):
        s, p = divmod(q, 4)
        r0 = RING + 4 * ((2 * q) % NR)
        r1 = RING + 4 * ((2 * q + 1) % NR)
        for d in range(4):
            a(f'v_perm_b32 v{T+32*s+4*(2*d)+p}, v{r1+d}, v{r0+d}, s40')
            a(f'v_perm_b32 v{T+32*s+4*(2*d+1)+p}, v{r1+d}, v{r0+d}, s41')
    def mfmas(s):
        for j in range(8):
            c = '0' if s == 0 else f'v[{ACC+4*j}:{ACC+4*j+3}]'
            a(f'v_mfma_f32_16x16x32_bf16 v[{ACC+4*j}:{ACC+4*j+3}], v[{AOP+4*s}:{AOP+4*s+3}], v[{T+32*s+4*j}:{T+32*s+4*j+3}], {c}')
    def tagcheck(regs, tw, twzero=True):
        for i, r in enumerate(regs):
            a(f'v_cmp_ne_u32 s[{48+2*i}:{49+2*i}], v{r}, {tw}')
        if twzero:
            a(f'v_cmp_eq_u32 vcc, 0, {tw}')
            a('s_or_b64 s[48:49], s[48:49], vcc')
        for i in range(1, len(regs)):
            a(f's_or_b64 s[48:49], s[48:49], s[{48+2*i}:{49+2*i}]')

    nxt = 0
    while nxt - dep[nxt] < 0:
        if nxt == ppos:
            raise Exception('ppos too early')
        vload(nxt)
        nxt += 1
    srd(a, 28, 20, WS_BYTES)
    srd(a, 32, 16, 4 * 4608 * 2)
    srd(a, 36, 18, 256)
    a(f'''v_and_b32 v9, 3, v4              ; b
    v_mul_u32_u24 v9, 18432, v9
    v_lshrrev_b32 v10, 2, v4         ; s'
    v_lshl_add_u32 v10, v10, 5, v7
    v_lshl_add_u32 v9, v10, 2, v9
    v_mov_b32 v10, 0
    s_lshl_b32 s47, s42, 10
    s_add_u32 s47, s47, {HG}
    v_lshlrev_b32 v11, 13, v5
    v_lshl_add_u32 v11, v6, 11, v11
    v_lshl_add_u32 v11, v4, 4, v11
    v_lshlrev_b32 v12, 3, v0
    v_lshlrev_b32 v13, 4, v0
    s_mul_i32 s56, s43, 18
    s_lshl_b32 s57, s56, 14
    s_add_u32 s57, s57, {YG}
    s_lshl_b32 s56, s42, 14
    s_add_u32 s56, s56, s57''')
    landed = -1
    pq = 0
    def do_perms():
        nonlocal pq
        while 2 * pq + 1 <= landed:
            perms(pq)
            pq += 1
    while nxt < 32:
        need = nxt - dep[nxt]
        if need > landed:
            vm.wait(f'L{need}')
            landed = need
        while nxt < 32 and nxt - dep[nxt] <= landed and (nxt - NR < 0 or (nxt - NR) // 2 < pq):
            if nxt == ppos:
                poll_issue()
            vload(nxt)
            nxt += 1
        do_perms()
    if ppos >= 32:
        poll_issue()
    stamp(1)
    vm.wait('P1')
    landed = max(landed, min(ppos, 32) - 1)
    tagcheck([P+1, P+3, P+5, P+7], f'v{TW}')
    a('s_cbranch_scc1 V_RETRY')
    a.label('V_GOT')
    stamp(2)
    for s in range(4):
        for k, src in enumerate([P, P+2, P+4, P+6]):
            if s == 0:
                a(f'v_mov_b32 v{AOP+k}, v{src}')
            else:
                a(f'v_mov_b32_dpp v{AOP+4*s+k}, v{src} row_shl:{4*s} row_mask:0xf bank_mask:0xf bound_ctrl:0')
    do_perms()
    a('s_nop 1')
    mf_done = pq // 4
    for s in range(mf_done):
        mfmas(s)
    while pq < 16:
        vm.wait(f'L{2*pq+1}')
        landed = 2 * pq + 1
        do_perms()
        if pq % 4 == 0 and pq < 16:
            a('s_nop 1')
            mfmas(mf_done)
            mf_done += 1
    a('s_nop 1')
    for s in range(mf_done, 4):
        mfmas(s)
    stamp(3)
    a('''s_mov_b64 exec, 0xffff
    s_nop 7''')
    for j in range(8):
        a(f'ds_write_b128 v11, v[{ACC+4*j}:{ACC+4*j+3}] offset:{256*j}')
    a(f'''s_mov_b64 exec, -1
    s_waitcnt lgkmcnt(0)
    s_barrier''')
    stamp(4)
    a(f'''ds_read_b64 v[16:17], v12
    ds_read_b64 v[18:19], v12 offset:8192
    ds_read_b64 v[20:21], v12 offset:4096
    ds_read_b64 v[22:23], v12 offset:12288
    v_mov_b32 v25, v{TW}
    v_mov_b32 v27, v{TW}
    v_mov_b32 v29, v{TW}
    v_mov_b32 v31, v{TW}
    s_add_u32 s58, s56, 8192
    s_waitcnt lgkmcnt(2)
    v_add_f32 v24, v16, v18
    v_add_f32 v26, v17, v19
    buffer_store_dwordx4 v[24:27], v13, s[28:31], s56 offen sc1
    s_waitcnt lgkmcnt(0)
    v_add_f32 v28, v20, v22
    v_add_f32 v30, v21, v23
    buffer_store_dwordx4 v[28:31], v13, s[28:31], s58 offen sc1''')
    stamp(5)
    a(f'''v_readfirstlane_b32 s59, v1
    s_cmp_lg_u32 s59, 0
    s_cbranch_scc1 END
    s_cmp_ge_u32 s42, 16
    s_cbranch_scc1 V_FIN
    s_lshl_b32 s58, s42, 10
    s_add_u32 s57, s57, s58
    v_and_b32 v14, 1, v2
    v_mul_u32_u24 v14, 18432, v14
    v_bfe_u32 v15, v2, 1, 4
    v_lshl_add_u32 v14, v15, 4, v14
    v_lshrrev_b32 v15, 5, v2
    v_lshl_add_u32 v14, v15, 1, v14
    s_lshl_b32 s60, s43, 10
    s_lshr_b32 s61, s42, 2
    s_lshl_b32 s61, s61, 8
    s_add_u32 s60, s60, s61
    s_and_b32 s61, s42, 3
    s_lshl_b32 s61, s61, 2
    s_add_u32 s60, s60, s61
    s_add_u32 s61, s60, 9216''')
    a.label('V_FPOLL')
    a('s_mov_b32 s58, s57')
    for r in range(18):
        a(f'buffer_load_dwordx4 v[{T+4*r}:{T+4*r+3}], v13, s[28:31], s58 offen sc1')
        if r < 17:
            a('s_add_u32 s58, s58, 16384')
    a('v_mov_b32 v16, 0')
    for r in range(18):
        a(f's_waitcnt vmcnt({17-r})')
        a(f'v_xor_b32 v17, v{T+4*r+1}, v{TW}')
        a(f'v_xor_b32 v18, v{T+4*r+3}, v{TW}')
        a(f'v_or3_b32 v16, v16, v17, v18')
        if r == 1:
            a(f'v_add_f32 v20, v{T}, v{T+4}')
            a(f'v_add_f32 v21, v{T+2}, v{T+6}')
        elif r > 1:
            a(f'v_add_f32 v20, v20, v{T+4*r}')
            a(f'v_add_f32 v21, v21, v{T+4*r+2}')
    a(f'''v_cmp_ne_u32 vcc, 0, v16
    s_cbranch_vccz V_FOK
    s_sub_u32 s46, s46, 1
    s_cmp_lg_u32 s46, 0
    s_cbranch_scc1 V_FPOLL''')
    a.label('V_FOK')
    a(f'''v_cvt_pk_bf16_f32 v20, v20, v21
    buffer_store_short v20, v14, s[32:35], s60 offen
    buffer_store_short_d16_hi v20, v14, s[32:35], s61 offen
    s_cmp_lg_u32 s3, 0
    s_cbranch_scc1 V_FIN
    s_mov_b64 exec, 1
    buffer_store_dword v{TW}, v10, s[28:31], 0 offen sc1''')
    a.label('V_FIN')
    stamp(6)
    stamp_store('V')
    a('s_endpgm')
    a.label('V_RETRY')
    a('s_sleep 1')
    poll_issue(False)
    a('s_waitcnt vmcnt(0)')
    tagcheck([P+1, P+3, P+5, P+7], f'v{TW}')
    a('''s_cbranch_scc0 V_GOT
    s_sub_u32 s46, s46, 1
    s_cmp_lg_u32 s46, 0
    s_cbranch_scc1 V_RETRY
    s_branch V_GOT''')

    a.label('ROLE_XH')
    a(f'''v_readfirstlane_b32 s59, v1
    s_cmp_lt_u32 s2, {NX}
    s_cbranch_scc1 ROLE_X''')
    vm = VM(a)
    Q = 32
    SZ = 16
    SC = 128
    W = 144
    ACC = 192
    P = 208
    AOP = 216
    a(f'''s_cmp_ge_u32 s59, 6
    s_cbranch_scc1 END
    s_sub_u32 s3, s2, {NX}           ; j
    v_mul_u32_u24 v5, 96, v1
    v_lshl_add_u32 v5, v3, 3, v5     ; 96w + 8kg
    v_mul_u32_u24 v6, {QROW}, v5
    v_lshl_add_u32 v6, v4, 4, v6
    v_mul_u32_u24 v7, {3*9216}, v1
    v_lshl_add_u32 v7, v4, 3, v7
    s_lshl_b32 s44, s3, 8
    s_lshl_b32 s45, s3, 7
    s_waitcnt lgkmcnt(0)
    s_load_dword s62, s[20:21], 0    ; epoch''')
    srd(a, 24, 6, 576 * 4608 * 4)
    srd(a, 32, 8, 18 * 4608 * 2)
    srd(a, 36, 10, 18 * 4608 * 2)
    for s in range(3):
        vm.issue(f'S{s}', f'buffer_load_dwordx2 v[{SZ+4*s}:{SZ+4*s+1}], v7, s[32:35], s45 offen')
        vm.issue(f'Z{s}', f'buffer_load_dwordx2 v[{SZ+4*s+2}:{SZ+4*s+3}], v7, s[36:39], s45 offen')
        if s < 2:
            a('s_add_u32 s45, s45, 9216')
    for s in range(3):
        for i in range(8):
            r = Q + 32 * s + 4 * i
            vm.issue(f'Q{s}_{i}', f'buffer_load_dwordx4 v[{r}:{r+3}], v6, s[24:27], s44 offen {qflags}')
            if i < 7:
                a(f's_add_u32 s44, s44, {QROW}')
            elif s < 2:
                a(f's_add_u32 s44, s44, {25*QROW}')
    srd(a, 28, 20, WS_BYTES)
    a(f'''v_and_b32 v9, 3, v4              ; b
    v_mul_u32_u24 v9, 2304, v9
    v_lshrrev_b32 v10, 2, v4         ; s'
    v_min_u32 v10, 2, v10
    v_lshl_add_u32 v10, v10, 5, v5   ; 96w + 8kg + 32 s'
    v_lshl_add_u32 v9, v10, 2, v9
    s_movk_i32 s47, {XG}''')
    def hpoll(track=True):
        ops = [('P0', f'buffer_load_dwordx4 v[{P}:{P+3}], v9, s[28:31], s47 offen sc1'),
               ('P1', f'buffer_load_dwordx4 v[{P+4}:{P+7}], v9, s[28:31], s47 offen offset:16 sc1')]
        for n, t in ops:
            if track:
                vm.issue(n, t)
            else:
                a(t)
    if not hlate:
        hpoll()
    a(f'''; LDS write addr: w*1024 + j*256 + n*16
    v_lshlrev_b32 v11, 10, v1
    v_lshl_add_u32 v11, v4, 4, v11
    v_and_b32 v12, 1, v0
    v_lshlrev_b32 v12, 9, v12
    v_bfe_u32 v13, v0, 1, 4
    v_lshl_add_u32 v12, v13, 4, v12
    v_lshrrev_b32 v13, 5, v0
    v_lshl_add_u32 v12, v13, 2, v12
    v_mul_u32_u24 v13, 18432, v13
    v_and_b32 v14, 31, v0
    v_lshl_add_u32 v13, v14, 3, v13
    s_lshl_b32 s56, s3, 8
    s_add_u32 s56, s56, {HG}
    s_waitcnt lgkmcnt(0)
    s_add_u32 s62, s62, {TAGC}
    s_or_b32 s62, s62, 1             ; tag''')
    for s in range(3):
        vm.wait(f'Z{s}')
        sreg = SZ + 4 * s
        zreg = SZ + 4 * s + 2
        for j in range(4):
            if j % 2 == 0:
                a(f'v_lshlrev_b32 v{SC+j}, 16, v{sreg+j//2}')
                a(f'v_lshlrev_b32 v{SC+4+j}, 16, v{zreg+j//2}')
            else:
                a(f'v_and_b32 v{SC+j}, 0xffff0000, v{sreg+j//2}')
                a(f'v_and_b32 v{SC+4+j}, 0xffff0000, v{zreg+j//2}')
            a(f'v_mul_f32 v{SC+4+j}, v{SC+4+j}, v{SC+j}')
        for p in range(4):
            vm.wait(f'Q{s}_{2*p+1}')
            for i in (2 * p, 2 * p + 1):
                for j in range(4):
                    r = Q + 32 * s + 4 * i + j
                    a(f'v_cvt_f32_i32 v{r}, v{r}')
                for j in range(4):
                    r = Q + 32 * s + 4 * i + j
                    a(f'v_fma_f32 v{r}, v{r}, v{SC+j}, -v{SC+4+j}')
            for j in range(4):
                a(f'v_cvt_pk_bf16_f32 v{W+16*s+4*j+p}, v{Q+32*s+4*(2*p)+j}, v{Q+32*s+4*(2*p+1)+j}')
    stamp(1)
    if hlate:
        a('s_barrier')
        hpoll()
    vm.wait('P1')
    tagcheck([P+1, P+3, P+5, P+7], 's62', False)
    a('s_cbranch_scc1 H_RETRY')
    a.label('H_GOT')
    stamp(2)
    for s in range(3):
        for k, src in enumerate([P, P+2, P+4, P+6]):
            if s == 0:
                a(f'v_mov_b32 v{AOP+k}, v{src}')
            else:
                a(f'v_mov_b32_dpp v{AOP+4*s+k}, v{src} row_shl:{4*s} row_mask:0xf bank_mask:0xf bound_ctrl:0')
    a('s_nop 1')
    for s in range(3):
        for j in range(4):
            c = '0' if s == 0 else f'v[{ACC+4*j}:{ACC+4*j+3}]'
            a(f'v_mfma_f32_16x16x32_bf16 v[{ACC+4*j}:{ACC+4*j+3}], v[{AOP+4*s}:{AOP+4*s+3}], v[{W+16*s+4*j}:{W+16*s+4*j+3}], {c}')
    a('''s_mov_b64 exec, 0xffff
    s_nop 7''')
    for j in range(4):
        a(f'ds_write_b128 v11, v[{ACC+4*j}:{ACC+4*j+3}] offset:{256*j}')
    a('''s_mov_b64 exec, -1
    s_waitcnt lgkmcnt(0)
    s_barrier
    s_cmp_ge_u32 s59, 2
    s_cbranch_scc1 END''')
    stamp(3)
    for w in range(6):
        a(f'ds_read2st64_b32 v[{16+2*w}:{17+2*w}], v12 offset0:{4*w} offset1:{4*w+1}')
    a('s_waitcnt lgkmcnt(0)')
    for w in range(1, 6):
        a(f'v_add_f32 v16, v16, v{16+2*w}')
        a(f'v_add_f32 v17, v17, v{17+2*w}')
    a('''v_cvt_pk_bf16_f32 v16, v16, v17
    v_mov_b32 v17, s62
    buffer_store_dwordx2 v[16:17], v13, s[28:31], s56 offen sc1''')
    stamp(4)
    if stamps:
        a('s_waitcnt vmcnt(0)')
    stamp(5); stamp(6)
    if stamps:
        a('s_cmp_lg_u32 s59, 0\ns_cbranch_scc1 END')
        stamp_store('H')
    a('s_endpgm')
    a.label('H_RETRY')
    a('s_sleep 1')
    hpoll(False)
    a('s_waitcnt vmcnt(0)')
    tagcheck([P+1, P+3, P+5, P+7], 's62', False)
    a('''s_cbranch_scc0 H_GOT
    s_sub_u32 s46, s46, 1
    s_cmp_lg_u32 s46, 0
    s_cbranch_scc1 H_RETRY
    s_branch H_GOT''')

    a.label('ROLE_X')
    UB = 16; TT = 48; ACC = 80
    a(f'''s_cmp_ge_u32 s59, 6
    s_cbranch_scc1 X_SPARE
    v_lshrrev_b32 v5, 2, v4          ; c (also c')
    v_min_u32 v6, 2, v5
    v_and_b32 v7, 3, v4              ; n' (also b)
    v_mul_u32_u24 v8, 96, v1
    v_lshl_add_u32 v8, v6, 5, v8
    v_lshl_add_u32 v8, v3, 3, v8     ; row = 96w + 32c + 8kg
    v_mul_u32_u24 v9, 1152, v8
    v_lshl_add_u32 v9, v7, 4, v9     ; U voffset
    v_mul_u32_u24 v10, 1152, v7
    v_lshl_add_u32 v10, v8, 1, v10   ; x voffset
    s_lshl_b32 s44, s2, 6
    s_waitcnt lgkmcnt(0)
    s_load_dword s62, s[20:21], 0    ; epoch''')
    srd(a, 24, 12, 576 * 576 * 2)
    srd(a, 32, 4, 4 * 576 * 2)
    for i in range(8):
        off = i * 1152
        if off > 4095:
            if i == 4:
                a('s_add_u32 s44, s44, 4608')
            off -= 4608
        a(f'buffer_load_dwordx4 v[{UB+4*i}:{UB+4*i+3}], v9, s[24:27], s44 offen offset:{off} {uflags}')
    a('buffer_load_dwordx4 v[12:15], v10, s[32:35], 0 offen')
    srd(a, 28, 20, WS_BYTES)
    a(f'''; LDS write addr: p*2048 + j*256 + (j>>1)*64 + n'*16, p = 3w + c
    v_mul_u32_u24 v11, 3, v1
    v_add_u32 v11, v11, v5
    v_lshlrev_b32 v11, 11, v11
    v_lshl_add_u32 v11, v7, 4, v11
    v_cmp_eq_u32 s[50:51], v3, v5
    v_cmp_gt_u32 vcc, 3, v5
    s_and_b64 s[50:51], s[50:51], vcc
    v_mul_u32_u24 v112, 576, v7
    v_lshl_add_u32 v112, v5, 4, v112
    v_lshl_add_u32 v112, v3, 2, v112
    v_mul_u32_u24 v113, 2304, v3
    v_lshl_add_u32 v113, v4, 3, v113
    s_lshl_b32 s56, s2, 7
    s_add_u32 s56, s56, {XG}''')
    for p in range(4):
        a(f's_waitcnt vmcnt({7-2*p})')
        for d in range(4):
            a(f'v_perm_b32 v{TT+4*(2*d)+p}, v{UB+4*(2*p+1)+d}, v{UB+4*(2*p)+d}, s40')
            a(f'v_perm_b32 v{TT+4*(2*d+1)+p}, v{UB+4*(2*p+1)+d}, v{UB+4*(2*p)+d}, s41')
    a('s_waitcnt vmcnt(0)')
    stamp(1)
    a('s_nop 1')
    for j in range(8):
        a(f'v_mfma_f32_16x16x32_bf16 v[{ACC+4*j}:{ACC+4*j+3}], v[12:15], v[{TT+4*j}:{TT+4*j+3}], 0')
    a('''s_mov_b64 exec, s[50:51]
    s_nop 7''')
    for j in range(8):
        a(f'ds_write_b128 v11, v[{ACC+4*j}:{ACC+4*j+3}] offset:{256*j+64*(j>>1)}')
    a(f'''s_mov_b64 exec, -1
    s_waitcnt lgkmcnt(0)
    s_barrier
    s_cmp_lg_u32 s59, 0
    s_cbranch_scc1 END
    s_add_u32 s62, s62, {TAGC}
    s_or_b32 s62, s62, 1             ; tag''')
    stamp(2)
    for p in range(18):
        a(f'ds_read2st64_b32 v[{16+2*p}:{17+2*p}], v112 offset0:{8*p} offset1:{8*p+1}')
        if p == 11:
            a('s_waitcnt lgkmcnt(6)')
    a('s_waitcnt lgkmcnt(0)')
    for p in range(1, 18):
        a(f'v_add_f32 v16, v16, v{16+2*p}')
        a(f'v_add_f32 v17, v17, v{17+2*p}')
    a('''v_cvt_pk_bf16_f32 v16, v16, v17
    v_mov_b32 v17, s62
    buffer_store_dwordx2 v[16:17], v113, s[28:31], s56 offen sc1''')
    stamp(3)
    if stamps:
        a('s_waitcnt vmcnt(0)')
    stamp(4); stamp(5); stamp(6)
    stamp_store('X')
    a('s_endpgm')
    a.label('X_SPARE')
    a(f'''s_cmp_lg_u32 s59, 7
    s_cbranch_scc1 END
    s_cmp_lg_u32 s2, 0
    s_cbranch_scc1 END
    s_waitcnt lgkmcnt(0)
    s_load_dword s62, s[20:21], 0''')
    srd(a, 36, 18, 256)
    a(f'''v_mov_b32 v10, 0
    s_mov_b64 exec, 1
    s_waitcnt lgkmcnt(0)
    s_add_u32 s62, s62, {TAGC}
    s_or_b32 s62, s62, 1
    v_mov_b32 v11, s62
    buffer_store_dword v11, v10, s[36:39], 0 offen sc1''')
    a.label('END')
    a('s_endpgm')
    a.label('CODE_END')
    a.raw('.section .rodata,"a"')
    a.raw(kd(NAME, 256, 102, 256))
    return a.text()

if __name__ == '__main__':
    import argparse
    ap = argparse.ArgumentParser()
    ap.add_argument('out')
    ap.add_argument('--D', default='4')
    ap.add_argument('--ppos', type=int, default=26)
    ap.add_argument('--stamps', action='store_true')
    ap.add_argument('--uflags', default='')
    ap.add_argument('--vdelay', type=int, default=0)
    ap.add_argument('--nocpf', action='store_true')
    ap.add_argument('--noV', action='store_true')
    ap.add_argument('--hlate', action='store_true')
    args = ap.parse_args()
    open(args.out, 'w').write(gen(D=args.D, ppos=args.ppos, stamps=args.stamps, uflags=args.uflags, vdelay=args.vdelay, cpf=not args.nocpf, noV=args.noV, hlate=args.hlate))
```

```python
import sys
from gen_base import A, kernel_begin, kd, HEADER
from gen_fused import VM
NAME = 'standalone__weight_only_int_quip__decode_kernel'

XG = 4096
HG = 16384
YG = 131072
CG = 20 * 2048
WS_BYTES = YG + 36 * CG
STAMP = 128 << 20
VROW = 9216
QROW = 18432
SPIN = 200000
FL = 36864
VL = 37888
LDS = VL + 8 * 2048

def srd_hi(a, d, nbytes):
    a(f's_mov_b32 s{d+2}, {nbytes}\ns_mov_b32 s{d+3}, 0x00020000')
def srd_lo(a, d, lo):
    a(f's_mov_b64 s[{d}:{d+1}], s[{lo}:{lo+1}]')

def gen(D=8, Dlow=5, K0=0, ppos=27, stamps=False, lite=False, vflags='nt', qflags='nt', hp=8, hb=8, vsleep=1,
        nodep=False, notail=0, outflags='', rsleep=4, hfirst=12, uflags='', sflags='', fdelay=0):
    a = A()
    a.raw(HEADER.rstrip('\n'))
    a.raw(f'; @launch grid=(256,1,1) block=(512,1,1) lds={LDS}')
    if stamps:
        a.raw('; wstamps=8')
    a.raw('.amdgcn_target "amdgcn-amd-amdhsa--gfx950"\n.text')
    kernel_begin(a, NAME)

    def stamp(i, force=False):
        if stamps and (not lite or i in (3, 6) or force):
            a(f's_memrealtime s[{80+2*i}:{81+2*i}]')
            a('s_waitcnt lgkmcnt(0)')
    def stamp_store(role):
        if stamps:
            if role is not None:
                a(f's_mov_b32 s94, {role}')
            a('s_branch STAMP_OUT')
        else:
            a('s_endpgm')
    def mktag(s):
        a(f'''s_and_b32 s61, s{s}, 0x7f7f7f7f
        s_add_u32 s61, s61, 0x01010101
        s_and_b32 s{s}, s{s}, 0x80808080
        s_xor_b32 s{s}, s{s}, s61''')
    def tagcheck(regs, tw, extra=None):
        for i, r in enumerate(regs):
            a(f'v_cmp_ne_u32 s[{48+2*(i%4)}:{49+2*(i%4)}], v{r}, {tw}')
            if i >= 4:
                a(f's_or_b64 s[56:57], s[56:57], s[{48+2*(i%4)}:{49+2*(i%4)}]')
            if i == 3:
                a('s_or_b64 s[48:49], s[48:49], s[50:51]')
                a('s_or_b64 s[52:53], s[52:53], s[54:55]')
                if extra:
                    a(extra)
                    a('s_or_b64 s[48:49], s[48:49], vcc')
                a('s_or_b64 s[56:57], s[48:49], s[52:53]')
    def zero_flags():
        a(f'''v_lshlrev_b32 v5, 2, v4
        v_mov_b32 v6, 0
        ds_write_b32 v5, v6 offset:{FL}''')

    if stamps:
        a('s_memrealtime s[80:81]')
    a(f'''s_load_dwordx16 s[4:19], s[0:1], 0
    s_load_dwordx2 s[20:21], s[0:1], 64
    v_readfirstlane_b32 s59, v0
    v_and_b32 v2, 63, v0             ; lane
    s_cmpk_ge_u32 s2, 256
    s_cbranch_scc1 END
    s_lshr_b32 s59, s59, 6
    s_cbranch_scc0 AUX
    v_lshrrev_b32 v3, 4, v2          ; kg
    v_and_b32 v4, 15, v2             ; n / m
    s_sub_u32 s3, s2, 18
    s_cmpk_ge_u32 s2, 72
    s_cbranch_scc1 NOT_X
    s_lshr_b32 s22, s2, 3
    s_and_b32 s23, s2, 6
    s_cbranch_scc0 ROLE_X
    s_lshl1_add_u32 s3, s22, 2
    s_sub_u32 s3, s2, s3
NOT_X:
    s_cmpk_lt_u32 s3, 144
    s_cbranch_scc1 ROLE_A
    s_cmpk_ge_u32 s3, 234
    s_cbranch_scc1 ROLE_L
    s_sub_u32 s3, s3, 144
    s_mul_hi_u32 s64, s3, {-(-(1<<32)//10)}     ; quad
    s_mul_i32 s60, s64, 10
    s_sub_u32 s60, s3, s60           ; i
    s_lshl1_add_u32 s64, s64, 1
    s_and_b32 s66, s60, 8
    s_add_u32 s66, s66, s60          ; slot: i < 8 ? i : i + 8
    s_mul_i32 s65, s60, 7
    s_add_u32 s65, s65, s59
    s_sub_u32 s65, s65, 1            ; r = 7i + (w-1)
    s_sub_u32 s67, s59, 1
    s_mov_b32 s74, 5
    s_mov_b64 vcc, -1''')
    if stamps:
        a('s_mov_b32 s94, 5')
    a.label('V_ENTRY')
    vm = VM(a)
    RING = 16
    NR = D + 2
    assert RING + 4 * NR <= 56
    P = 56
    TW = 10
    T = 64
    AB = [192, 208]
    ACC = 224
    OUT = 232
    TB = 240
    a(f'''s_lshr_b32 s42, s65, 1           ; kb
    s_and_b32 s43, s65, 1
    s_lshl1_add_u32 s43, s64, s43    ; cgp
    v_mul_u32_u24 v8, {8*VROW}, v3
    v_lshl_add_u32 v8, v4, 4, v8     ; V voffset
    s_mul_i32 s44, s42, {128*VROW}
    s_lshl_b32 s45, s43, 8
    s_add_u32 s44, s44, s45          ; V soffset
    s_movk_i32 s45, {VROW}''')
    srd_hi(a, 24, 4608 * 4608 * 2)
    a('s_waitcnt lgkmcnt(0)')
    if fdelay:
        a(f's_sleep {fdelay}')
    srd_lo(a, 24, 14)
    state = {'row': 0}
    def vload(k):
        s, i = divmod(k, 8)
        row = 32 * s + i
        if row == state['row'] + 1:
            a('s_add_u32 s44, s44, s45')
        elif row != state['row']:
            a(f's_add_u32 s44, s44, {(row - state["row"]) * VROW}')
        state['row'] = row
        r = RING + 4 * (k % NR)
        if Dlow < D and k - Dlow >= 0 and f'L{k-Dlow}' in vm.q:
            n = len(vm.q) - 1 - vm.q.index(f'L{k-Dlow}')
            if k >= K0:
                a(f's_cbranch_vccz VD{k}')
            a(f's_waitcnt vmcnt({n})')
            a.label(f'VD{k}')
        vm.issue(f'L{k}', f'buffer_load_dwordx4 v[{r}:{r+3}], v8, s[24:27], s44 offen {vflags}')
    nxt = 0
    while nxt < min(D, Dlow):
        vload(nxt)
        nxt += 1
    a('s_branch V_MAIN')

    a.label('AUX')
    a(f'''s_getpc_b64 s[64:65]
PC0:
    s_mov_b32 s66, CODE_END-PC0
    s_mov_b32 s67, 0x00020000
    v_lshlrev_b32 v1, 7, v2
    s_movk_i32 s42, 8192
    buffer_load_dword v4, v1, s[64:67], 0 offen offset:512
    buffer_load_dword v5, v1, s[64:67], s42 offen offset:512
    s_lshr_b32 s42, s2, 3
    s_and_b32 s43, s2, 6
    s_cbranch_scc1 AUXQ
    ; XCD 0 hosts column blocks 0..4, XCD 1 blocks 4..8 ; 18 rows x 5 blocks by this wave
    s_mul_i32 s42, s42, {18*1152}
    s_and_b32 s43, s2, 1
    s_lshl_b32 s43, s43, 9
    s_add_u32 s42, s42, s43
    v_mul_u32_u24 v3, 13, v2
    v_lshrrev_b32 v3, 6, v3          ; l / 5 (l < 64)
    v_mul_u32_u24 v6, {1152-640}, v3
    v_lshl_add_u32 v3, v2, 7, v6     ; row*1152 + (l - 5 row)*128
    s_mov_b32 s44, -1
    s_movk_i32 s45, 0x1fff           ; 45 lanes = 9 rows''')
    srd_hi(a, 24, 576 * 576 * 2)
    a('''s_movk_i32 s66, 4608
    s_mov_b64 exec, s[44:45]
    s_add_u32 s43, s42, 10368
    s_waitcnt lgkmcnt(0)''')
    srd_lo(a, 24, 12)
    srd_lo(a, 64, 4)
    a(f'''buffer_load_dword v7, v1, s[64:67], 0 offen {uflags}
    buffer_load_dword v8, v3, s[24:27], s42 offen {uflags}
    buffer_load_dword v9, v3, s[24:27], s43 offen {uflags}
    s_barrier
    s_endpgm
AUXQ:
    ; slow strips (x-2) + 6k, k = l % 3 ; row = 18*(id>>3) + l / 3
    v_mul_u32_u24 v6, 6144, v2       ; l*6144 = row*18432 + k*6144
    s_mul_i32 s42, s42, {18*QROW}
    s_and_b32 s43, s2, 7
    s_lshl_b32 s43, s43, 10
    s_add_u32 s42, s42, s43
    s_sub_u32 s42, s42, {2048-384}
    s_mov_b32 s66, {576*4608*4}
    s_mov_b32 exec_hi, 0x3fffff
    s_waitcnt lgkmcnt(0)
    s_mov_b64 s[64:65], s[6:7]
    buffer_load_dword v7, v6, s[64:67], s42 offen {qflags}
    s_cmpk_eq_u32 s2, 255
    s_cbranch_scc1 AUX2
    s_barrier
    s_endpgm''')

    a.label('ROLE_X')
    UB = 16; TT = 48; XACC = 80
    a(f'''s_cmp_eq_u32 s59, 7
    s_cbranch_scc1 END
    s_sub_u32 s60, s59, 1            ; xw 0..5
    v_lshrrev_b32 v5, 2, v4          ; c (also c')
    v_min_u32 v6, 2, v5
    v_and_b32 v7, 3, v4              ; n' (also b)
    v_lshlrev_b32 v8, 5, v6
    v_lshl_add_u32 v8, v3, 3, v8     ; 32c + 8kg
    v_mul_u32_u24 v9, 1152, v8
    v_lshl_add_u32 v9, v7, 4, v9     ; U voffset
    s_and_b32 s23, s2, 1
    s_mul_i32 s3, s23, 9
    s_add_u32 s3, s3, s22            ; strip
    s_lshl_b32 s44, s3, 6
    s_mul_i32 s45, s60, {96*1152}
    s_add_u32 s44, s44, s45
    s_add_u32 s47, s44, 4608
    v_mul_u32_u24 v10, 1152, v7
    v_lshl_add_u32 v10, v8, 1, v10   ; x voffset
    s_mul_i32 s45, s60, 192''')
    srd_hi(a, 24, 576 * 576 * 2)
    srd_hi(a, 32, 4 * 576 * 2)
    a('s_waitcnt lgkmcnt(0)')
    srd_lo(a, 24, 12)
    srd_lo(a, 32, 4)
    for i in range(8):
        a(f'buffer_load_dwordx4 v[{UB+4*i}:{UB+4*i+3}], v9, s[24:27], s{44 if i < 4 else 47} offen offset:{(i%4)*1152} {uflags}')
    a('buffer_load_dwordx4 v[12:15], v10, s[32:35], s45 offen')
    a('s_branch X_MAIN')

    a.label('ROLE_A')
    a(f'''s_sub_u32 s22, s3, 14            ; fi + 4
    s_mul_hi_u32 s23, s22, {-(-(1<<32)//7)}
    s_add_u32 s22, s22, s23
    s_sub_u32 s22, s22, 4
    s_lshl3_add_u32 s23, s3, 3
    s_cmp_lt_u32 s3, 18
    s_cselect_b32 s3, s23, s22
    s_cmp_ge_u32 s59, 4
    s_cbranch_scc1 A_V''')
    hm = VM(a)
    Q = 32; SZ = 16; SC = 128; W = 144; HACC = 192; HP = 208; AOP = 224
    a(f'''s_setprio 3
    s_sub_u32 s60, s59, 1            ; hw
    v_lshrrev_b32 v5, 3, v4          ; c
    v_and_b32 v6, 7, v4              ; n'
    v_lshlrev_b32 v7, 2, v5
    v_add_u32 v7, v7, v3             ; 4c + kg
    v_mul_u32_u24 v7, {8*QROW}, v7
    v_lshl_add_u32 v7, v6, 4, v7
    s_mul_i32 s44, s60, {192*QROW}
    s_lshl_b32 s45, s3, 7
    s_add_u32 s44, s44, s45
    s_movk_i32 s45, {QROW}''')
    srd_hi(a, 24, 576 * 4608 * 4)
    a('s_waitcnt lgkmcnt(0)')
    if fdelay:
        a(f's_sleep {fdelay}')
    srd_lo(a, 24, 6)
    def qload(k):
        s, i = divmod(k, 8)
        r = Q + 32 * s + 4 * i
        hm.issue(f'Q{s}_{i}', f'buffer_load_dwordx4 v[{r}:{r+3}], v7, s[24:27], s44 offen {qflags}')
        if i < 7:
            a('s_add_u32 s44, s44, s45')
        elif s < 2:
            a(f's_add_u32 s44, s44, {57*QROW}')
    for k in range(hfirst):
        qload(k)
    a.label('FIRST_KB_END')
    a(f'''s_load_dword s62, s[20:21], 0    ; epoch
    v_mul_u32_u24 v8, 9216, v5
    v_lshl_add_u32 v8, v6, 3, v8
    s_mul_i32 s46, s60, {6*9216}
    s_lshl_b32 s47, s3, 6
    s_add_u32 s46, s46, s47''')
    srd_lo(a, 32, 8); srd_hi(a, 32, 18 * 4608 * 2)
    srd_lo(a, 36, 10); srd_hi(a, 36, 18 * 4608 * 2)
    for s in range(3):
        hm.issue(f'S{s}', f'buffer_load_dwordx2 v[{SZ+4*s}:{SZ+4*s+1}], v8, s[32:35], s46 offen {sflags}')
        hm.issue(f'Z{s}', f'buffer_load_dwordx2 v[{SZ+4*s+2}:{SZ+4*s+3}], v8, s[36:39], s46 offen {sflags}')
        if s < 2:
            a('s_add_u32 s46, s46, s45')
    for k in range(hfirst, 24):
        qload(k)
    srd_lo(a, 28, 20); srd_hi(a, 28, WS_BYTES)
    srd_lo(a, 32, 16); srd_hi(a, 32, 4 * 4608 * 2)
    a(f'''s_mov_b32 s46, {SPIN}
    v_and_b32 v9, 3, v4              ; b
    v_mul_u32_u24 v9, 2304, v9
    v_lshl_add_u32 v9, v3, 5, v9     ; + 8kg*4
    v_lshrrev_b32 v10, 2, v4         ; ch
    v_and_b32 v11, 1, v10
    v_lshl_add_u32 v11, v11, 7, v9
    v_lshl_add_u32 v9, v10, 7, v9
    s_mul_i32 s47, s60, 768
    s_add_u32 s47, s47, {XG}
    v_lshlrev_b32 v12, 10, v5
    v_lshl_add_u32 v12, v6, 4, v12
    s_lshl_b32 s58, s60, 11
    v_add_u32 v12, s58, v12
    v_and_b32 v13, 1, v2
    v_lshlrev_b32 v13, 9, v13
    v_bfe_u32 v14, v2, 1, 3
    v_lshl_add_u32 v13, v14, 4, v13
    v_lshl_add_u32 v13, v3, 2, v13
    v_mul_u32_u24 v14, 18432, v3
    v_lshl_add_u32 v14, v4, 3, v14
    s_lshl_b32 s58, s3, 7
    s_add_u32 s58, s58, {HG}
    s_lshl_b32 s61, s60, 2
    v_mov_b32 v15, s61''')
    zero_flags()
    a('s_waitcnt lgkmcnt(0)')
    mktag(62)
    def hpoll(track=True):
        ops = [('P0', f'buffer_load_dwordx4 v[{HP}:{HP+3}], v9, s[28:31], s47 offen sc1'),
               ('P1', f'buffer_load_dwordx4 v[{HP+4}:{HP+7}], v9, s[28:31], s47 offen offset:16 sc1'),
               ('P2', f'buffer_load_dwordx4 v[{HP+8}:{HP+11}], v11, s[28:31], s47 offen offset:512 sc1'),
               ('P3', f'buffer_load_dwordx4 v[{HP+12}:{HP+15}], v11, s[28:31], s47 offen offset:528 sc1')]
        for n, t in ops:
            if track:
                hm.issue(n, t)
            else:
                a(t)
    def hevents(pi):
        if pi == hp:
            hpoll()
        if pi == hb:
            a('s_barrier')
    for s in range(3):
        hm.wait(f'Z{s}')
        sreg = SZ + 4 * s
        zreg = SZ + 4 * s + 2
        for j in range(4):
            if j % 2 == 0:
                a(f'v_lshlrev_b32 v{SC+j}, 16, v{sreg+j//2}')
                a(f'v_lshlrev_b32 v{SC+4+j}, 16, v{zreg+j//2}')
            else:
                a(f'v_and_b32 v{SC+j}, 0xffff0000, v{sreg+j//2}')
                a(f'v_and_b32 v{SC+4+j}, 0xffff0000, v{zreg+j//2}')
            a(f'v_mul_f32 v{SC+4+j}, v{SC+4+j}, v{SC+j}')
        for p in range(4):
            hevents(4 * s + p)
            hm.wait(f'Q{s}_{2*p+1}')
            for i in (2 * p, 2 * p + 1):
                for j in range(4):
                    r = Q + 32 * s + 4 * i + j
                    a(f'v_cvt_f32_i32 v{r}, v{r}')
                for j in range(4):
                    r = Q + 32 * s + 4 * i + j
                    a(f'v_fma_f32 v{r}, v{r}, v{SC+j}, -v{SC+4+j}')
            for j in range(4):
                a(f'v_cvt_pk_bf16_f32 v{W+16*s+4*j+p}, v{Q+32*s+4*(2*p)+j}, v{Q+32*s+4*(2*p+1)+j}')
    hevents(12)
    stamp(1)
    hm.wait('P3')
    htags = [HP + 1 + 2 * i for i in range(8)]
    tagcheck(htags, 's62')
    if not nodep:
        a('s_cbranch_scc1 H_RETRY')
    a.label('H_GOT')
    stamp(2)
    for k, src in enumerate([HP, HP+2, HP+4, HP+6]):
        a(f'v_mov_b32 v{AOP+k}, v{src}')
        a(f'v_mov_b32_dpp v{AOP+4+k}, v{src} row_shl:8 row_mask:0xf bank_mask:0xf bound_ctrl:0')
        a(f'v_mov_b32 v{AOP+8+k}, v{src+8}')
    a('s_nop 1')
    for s in range(3):
        for j in range(4):
            c = '0' if s == 0 else f'v[{HACC+4*j}:{HACC+4*j+3}]'
            a(f'v_mfma_f32_16x16x32_bf16 v[{HACC+4*j}:{HACC+4*j+3}], v[{AOP+4*s}:{AOP+4*s+3}], v[{W+16*s+4*j}:{W+16*s+4*j+3}], {c}')
    a('''s_mov_b32 s48, 0xff0000ff
    s_mov_b32 s49, 0
    v_mov_b32 v16, 1
    s_mov_b64 exec, s[48:49]
    s_nop 4''')
    for j in range(4):
        a(f'ds_write_b128 v12, v[{HACC+4*j}:{HACC+4*j+3}] offset:{256*j}')
    a(f'''s_mov_b64 exec, -1
    v_mov_b32 v17, {FL}
    s_cmp_lg_u32 s60, 0
    s_cbranch_scc1 REDUCER''')
    a.label('H_SPIN')
    a('''ds_read2_b32 v[18:19], v17 offset0:9 offset1:10
    s_waitcnt lgkmcnt(0)
    v_and_b32 v18, v18, v19
    v_cmp_ne_u32 vcc, 1, v18
    s_cbranch_vccz H_RDY
    s_sub_u32 s46, s46, 1
    s_cmp_lg_u32 s46, 0
    s_cbranch_scc1 H_SPIN''')
    a.label('H_RDY')
    stamp(3)
    for p in range(6):
        a(f'ds_read2st64_b32 v[{20+2*p}:{21+2*p}], v13 offset0:{4*p} offset1:{4*p+1}')
    a('s_waitcnt lgkmcnt(0)')
    for p in range(1, 6):
        a(f'v_add_f32 v20, v20, v{20+2*p}')
        a(f'v_add_f32 v21, v21, v{21+2*p}')
    a('''v_cvt_pk_bf16_f32 v20, v20, v21
    v_mov_b32 v21, s62
    buffer_store_dwordx2 v[20:21], v14, s[28:31], s58 offen sc1''')
    stamp(4)
    if stamps and not lite:
        a('s_waitcnt vmcnt(0)')
    stamp(5); stamp(6)
    stamp_store(2)
    a.label('H_RETRY')
    a('s_sleep 1')
    hpoll(False)
    a('s_waitcnt vmcnt(0)')
    tagcheck(htags, 's62')
    a('''s_cbranch_scc0 H_GOT
    s_sub_u32 s46, s46, 1
    s_cmp_lg_u32 s46, 0
    s_cbranch_scc1 H_RETRY
    s_branch H_GOT''')

    a.label('REDUCER')
    R = 32; RT = 24
    a(f'''ds_write_b32 v15, v16 offset:{FL+32}
    s_setprio 0
    s_lshr_b32 s42, s3, 4
    s_lshl1_add_u32 s42, s42, s60
    s_sub_u32 s42, s42, 1
    s_and_b32 s43, s3, 1
    s_lshl1_add_u32 s42, s42, s43
    s_bfe_u32 s43, s3, 0x30001
    s_mul_i32 s68, s42, {CG}
    s_lshl_b32 s70, s43, 8
    s_add_u32 s68, s68, s70
    s_add_u32 s68, s68, {YG}
    v_lshlrev_b32 v14, 11, v3
    v_lshl_add_u32 v14, v4, 4, v14   ; pg*2048 + n*16
    v_mul_u32_u24 v15, 9216, v3
    v_lshl_add_u32 v15, v4, 4, v15
    s_lshl_b32 s72, s42, 8
    s_lshl1_add_u32 s72, s43, s72
    s_cmp_eq_u32 s60, 2
    s_cselect_b32 s75, 0xffff, 0
    s_cselect_b32 s73, 19, 31
    s_and_b32 s70, s62, 0xff
    v_mov_b32 v{RT}, s70
    s_bfe_u32 s70, s62, 0x80008
    v_mov_b32 v{RT+1}, s70
    s_bfe_u32 s70, s62, 0x80010
    v_mov_b32 v{RT+2}, s70
    s_lshr_b32 s70, s62, 24
    v_mov_b32 v{RT+3}, s70''')
    for k in range(12):
        a(f'v_mov_b32 v{R+8+k}, v{RT+k%4}')
    stamp(3)
    if notail:
        stamp(6)
        stamp_store(3)
    a.label('R_WAIT')
    a(f'''s_sleep {rsleep}
    ds_read_b32 v18, v17
    s_waitcnt lgkmcnt(0)
    v_cmp_ne_u32 vcc, 1, v18
    s_cbranch_vccz R_POLL
    s_sub_u32 s46, s46, 1
    s_cmp_lg_u32 s46, 0
    s_cbranch_scc1 R_WAIT''')
    a.label('R_POLL')
    for q in range(5):
        a(f'''s_bitcmp1_b32 s73, {q}
        s_cbranch_scc0 R_S{q}
        s_add_u32 s70, s68, {q*8192}''')
        if q == 4:
            a('s_mov_b32 exec_hi, s75')
        a(f'buffer_load_dwordx4 v[{R+4*q}:{R+4*q+3}], v14, s[28:31], s70 offen sc1')
        if q == 4:
            a('s_mov_b32 exec_hi, -1')
        a.label(f'R_S{q}')
    a('s_mov_b32 s73, 0')
    a('s_waitcnt vmcnt(0)')
    for q in range(5):
        a(f'''v_xor_b32 v16, v{R+4*q}, v{RT}
        v_bitop3_b32 v16, v16, v{R+4*q+1}, v{RT+1} bitop3:0xf6
        v_bitop3_b32 v16, v16, v{R+4*q+2}, v{RT+2} bitop3:0xf6
        v_bitop3_b32 v16, v16, v{R+4*q+3}, v{RT+3} bitop3:0xf6
        v_and_b32 v16, 0xff, v16
        v_cmp_ne_u32 vcc, 0, v16
        s_cmp_lg_u64 vcc, 0
        s_cselect_b32 s70, {1<<q}, 0
        s_or_b32 s73, s73, s70''')
    if nodep:
        a('s_branch R_OK')
    a(f'''s_cbranch_scc0 R_OK
    s_sub_u32 s46, s46, 1
    s_cmp_lg_u32 s46, 0
    s_cbranch_scc1 R_POLL''')
    a.label('R_OK')
    stamp(5)
    for q in range(5):
        for k in range(4):
            a(f'v_xor_b32 v{R+4*q+k}, v{R+4*q+k}, v{RT+k}')
    for k in range(4):
        a(f'v_add_f32 v{R+k}, v{R+k}, v{R+4+k}')
        a(f'v_add_f32 v{R+8+k}, v{R+8+k}, v{R+12+k}')
    for k in range(4):
        a(f'v_add_f32 v{R+k}, v{R+k}, v{R+16+k}')
    for k in range(4):
        a(f'v_add_f32 v{R+k}, v{R+k}, v{R+8+k}')
    a(f'''s_nop 1
    v_permlane16_swap_b32 v{R}, v{R+1}
    v_permlane16_swap_b32 v{R+2}, v{R+3}
    s_nop 1
    v_add_f32 v{R}, v{R}, v{R+1}
    v_add_f32 v{R+2}, v{R+2}, v{R+3}
    s_nop 1
    v_permlane32_swap_b32 v{R}, v{R+2}
    s_nop 1
    v_add_f32 v{R}, v{R}, v{R+2}
    v_cvt_pk_bf16_f32 v{R}, v{R}, v{R}
    buffer_store_short v{R}, v15, s[32:35], s72 offen {outflags}
    s_cmp_lg_u32 s72, 0
    s_cbranch_scc1 R_FIN
    s_mov_b64 exec, 1
    v_mov_b32 v16, s62
    v_mov_b32 v17, 0
    buffer_store_dword v16, v17, s[28:31], 0 offen sc1''')
    a.label('R_FIN')
    stamp(6)
    stamp_store(3)

    a.label('V_MAIN')
    def poll_issue(track=True):
        ops = [('PT', f'buffer_load_dwordx2 v[{TW}:{TW+1}], v12, s[36:39], 0 offen sc1'),
               ('P0', f'buffer_load_dwordx4 v[{P}:{P+3}], v9, s[28:31], s47 offen sc1'),
               ('P1', f'buffer_load_dwordx4 v[{P+4}:{P+7}], v9, s[28:31], s47 offen offset:16 sc1')]
        for n, t in ops:
            if track:
                vm.issue(n, t)
            else:
                a(t)
    def perms(q):
        s, p = divmod(q, 4)
        r0 = RING + 4 * ((2 * q) % NR)
        r1 = RING + 4 * ((2 * q + 1) % NR)
        for d in range(4):
            a(f'v_perm_b32 v{T+32*s+4*(2*d)+p}, v{r1+d}, v{r0+d}, s40')
            a(f'v_perm_b32 v{T+32*s+4*(2*d+1)+p}, v{r1+d}, v{r0+d}, s41')
    def abuild(s, buf):
        for g in range(4):
            if s > g:
                m = f'row_shl:{4*(s-g)}'
            elif s < g:
                m = f'row_shr:{4*(g-s)}'
            else:
                m = 'quad_perm:[0,1,2,3]'
            for k, src in enumerate([P, P+2, P+4, P+6]):
                a(f'v_mov_b32_dpp v{buf+4*g+k}, v{src} {m} row_mask:0xf bank_mask:{1<<g:#x}')
    def mfmas(s, buf):
        for j in [0, 4, 1, 5, 2, 6, 3, 7]:
            ac = ACC + 4 * (j >> 2)
            g = j & 3
            c = '0' if (s == 0 and g == 0) else f'v[{ac}:{ac+3}]'
            a(f'v_mfma_f32_16x16x32_bf16 v[{ac}:{ac+3}], v[{buf+4*g}:{buf+4*g+3}], v[{T+32*s+4*j}:{T+32*s+4*j+3}], {c}')
    a('s_cbranch_vccz V_NOBAR')
    zero_flags()
    a('''s_waitcnt lgkmcnt(0)
    s_barrier''')
    a.label('V_NOBAR')
    srd_lo(a, 28, 20); srd_hi(a, 28, WS_BYTES)
    srd_lo(a, 36, 18); srd_hi(a, 36, 256)
    a(f'''s_mov_b32 s40, 0x05040100
    s_mov_b32 s41, 0x07060302
    s_mov_b32 s46, {SPIN}
    v_and_b32 v9, 3, v4              ; b
    v_mul_u32_u24 v9, 18432, v9
    v_lshrrev_b32 v12, 2, v4         ; s'
    v_lshl_add_u32 v9, v12, 7, v9
    v_lshl_add_u32 v9, v3, 5, v9
    v_mov_b32 v12, 0
    s_lshl_b32 s47, s42, 9
    s_add_u32 s47, s47, {HG}
    v_lshlrev_b32 v13, 4, v2
    s_mul_i32 s69, s43, 20
    s_add_u32 s69, s69, s66
    s_lshl_b32 s69, s69, 11
    s_add_u32 s69, s69, {YG}
    s_movk_i32 s71, 0xff
    s_lshl_b32 s70, s67, 11
    v_add_u32 v14, s70, v13
    s_and_b32 s70, s67, 1
    s_lshl_b32 s70, s70, 4
    s_lshr_b32 s72, s67, 1
    v_mov_b32 v15, s70''')
    for r in range(32):
        a(f'v_mov_b32 v{AB[0]+r}, 0')
    landed = -1
    pq = 0
    def do_perms():
        nonlocal pq
        while 2 * pq + 1 <= landed:
            perms(pq)
            pq += 1
    while nxt < 32:
        need = nxt - D
        if need > landed:
            vm.wait(f'L{need}')
            landed = need
        while nxt < 32 and nxt - D <= landed and (nxt - NR < 0 or (nxt - NR) // 2 < pq):
            if nxt == ppos:
                poll_issue()
            vload(nxt)
            nxt += 1
        do_perms()
    if ppos >= 32:
        poll_issue()
    stamp(1)
    while 2 * pq + 1 < min(ppos, 32):
        vm.wait(f'L{2*pq+1}')
        landed = 2 * pq + 1
        do_perms()
    vm.wait('P1')
    landed = max(landed, min(ppos, 32) - 1)
    tagcheck([P+1, P+3, P+5, P+7], f'v{TW}', f'v_cmp_ne_u32 vcc, 1, v{TW+1}')
    if not nodep:
        a('s_cbranch_scc1 V_RETRY')
    a.label('V_GOT')
    stamp(2)
    assert pq // 4 >= 3
    for s in range(3):
        abuild(s, AB[0])
        a('s_nop 1')
        mfmas(s, AB[0])
    abuild(3, AB[1])
    a(f'''v_mov_b32 v{TB}, v{TW}
    v_lshrrev_b32 v{TB+1}, 8, v{TW}
    v_lshrrev_b32 v{TB+2}, 16, v{TW}
    v_lshrrev_b32 v{TB+3}, 24, v{TW}''')
    while pq < 16:
        vm.wait(f'L{2*pq+1}')
        landed = 2 * pq + 1
        do_perms()
    stamp(3)
    a('s_nop 1')
    mfmas(3, AB[1])
    if notail == 1:
        a('s_branch V_FIN')
    a(f'''s_cmp_ge_u32 s67, s74
    s_cbranch_scc1 V_DES
    s_lshl_b32 s72, s72, 2
    v_add_u32 v15, s72, v15
    v_mov_b32 v16, 1
    s_nop 2
    ds_write_b128 v14, v[{ACC}:{ACC+3}] offset:{VL}
    ds_write_b128 v14, v[{ACC+4}:{ACC+7}] offset:{VL+1024}
    ds_write_b32 v15, v16 offset:{FL}''')
    a.label('V_FIN')
    stamp(4); stamp(5); stamp(6)
    stamp_store(None)
    PR = T
    a.label('V_DES')
    a(f'''s_cmp_eq_u32 s72, 0
    s_cbranch_scc1 V_PUB0''')
    a.label('V_DRETRY')
    a(f'''ds_read_b128 v[16:19], v15 offset:{FL}
    ds_read_b128 v[{PR}:{PR+3}], v14 offset:{VL-4096}
    ds_read_b128 v[{PR+4}:{PR+7}], v14 offset:{VL-4096+1024}
    s_cmp_eq_u32 s72, 1
    s_cbranch_scc1 V_DWAIT
    ds_read_b128 v[{PR+8}:{PR+11}], v14 offset:{VL-8192}
    ds_read_b128 v[{PR+12}:{PR+15}], v14 offset:{VL-8192+1024}
    s_cmp_eq_u32 s72, 2
    s_cbranch_scc1 V_DWAIT
    ds_read_b128 v[{PR+16}:{PR+19}], v14 offset:{VL-12288}
    ds_read_b128 v[{PR+20}:{PR+23}], v14 offset:{VL-12288+1024}''')
    a.label('V_DWAIT')
    a(f'''s_waitcnt lgkmcnt(0)
    v_add3_u32 v16, v16, v17, v18
    v_cmp_ne_u32 vcc, s72, v16
    s_cbranch_vccz V_DOK
    s_sub_u32 s46, s46, 1
    s_cmp_lg_u32 s46, 0
    s_cbranch_scc1 V_DRETRY''')
    a.label('V_DOK')
    for pi in range(3):
        for k in range(8):
            a(f'v_add_f32 v{ACC+k}, v{ACC+k}, v{PR+8*pi+k}')
        if pi < 2:
            a(f'''s_cmp_eq_u32 s72, {pi+1}
            s_cbranch_scc1 V_PUB''')
    a('s_branch V_PUB')
    a.label('V_PUB0')
    a('s_nop 4')
    a.label('V_PUB')
    for k in range(4):
        a(f'v_bfi_b32 v{OUT+k}, s71, v{TB+k}, v{ACC+k}')
    a(f'buffer_store_dwordx4 v[{OUT}:{OUT+3}], v13, s[28:31], s69 offen sc1')
    for k in range(4):
        a(f'v_bfi_b32 v{OUT+4+k}, s71, v{TB+k}, v{ACC+4+k}')
    a(f'buffer_store_dwordx4 v[{OUT+4}:{OUT+7}], v13, s[28:31], s69 offen offset:1024 sc1')
    stamp(4)
    if stamps and not lite:
        a('s_waitcnt vmcnt(0)')
    stamp(5); stamp(6)
    if stamps:
        a('s_add_u32 s94, s94, 10')
    stamp_store(None)
    a.label('V_RETRY')
    a(f's_sleep {vsleep}')
    poll_issue(False)
    a('s_waitcnt vmcnt(0)')
    tagcheck([P+1, P+3, P+5, P+7], f'v{TW}', f'v_cmp_ne_u32 vcc, 1, v{TW+1}')
    a('''s_cbranch_scc0 V_GOT
    s_sub_u32 s46, s46, 1
    s_cmp_lg_u32 s46, 0
    s_cbranch_scc1 V_RETRY
    s_branch V_GOT''')

    a.label('A_V')
    a(f'''s_lshr_b32 s64, s3, 4
    s_lshl_b32 s64, s64, 1
    s_and_b32 s66, s3, 15            ; j = slot
    s_sub_u32 s67, s59, 4            ; local
    s_mov_b32 s74, 2
    s_lshl2_add_u32 s65, s66, s67
    s_add_u32 s65, s65, 8            ; r
    s_mov_b64 vcc, 0''')
    if stamps:
        a('s_mov_b32 s94, 4')
    a('''s_barrier
    s_branch V_ENTRY''')
    a.label('ROLE_L')
    a(f'''s_sub_u32 s3, s3, 234
    s_mul_i32 s64, s3, 5
    s_add_u32 s64, s64, s59
    s_sub_u32 s64, s64, 1            ; cp
    s_cmp_gt_u32 s59, 5
    s_cbranch_scc1 END
    s_cmp_ge_u32 s64, 18
    s_cbranch_scc1 END
    s_and_b32 s65, s64, 1
    s_add_u32 s65, s65, 70
    s_or_b32 s64, s64, 1
    s_mov_b32 s66, 18
    s_mov_b32 s67, 0
    s_mov_b32 s74, 0
    s_mov_b64 vcc, 0''')
    if stamps:
        a('s_mov_b32 s94, 7')
    a('s_branch V_ENTRY')

    a.label('X_MAIN')
    if lite:
        stamp(5, True)
    a('s_load_dword s62, s[20:21], 0    ; epoch')
    srd_lo(a, 28, 20); srd_hi(a, 28, WS_BYTES)
    a(f'''s_mov_b32 s40, 0x05040100
    s_mov_b32 s41, 0x07060302
    s_mul_i32 s45, s60, 3
    v_add_u32 v11, s45, v5
    v_lshlrev_b32 v11, 11, v11
    v_lshl_add_u32 v11, v7, 4, v11
    v_cmp_eq_u32 s[50:51], v3, v5
    v_cmp_gt_u32 vcc, 3, v5
    s_and_b64 s[50:51], s[50:51], vcc
    v_mul_u32_u24 v112, 576, v7
    v_lshl_add_u32 v112, v5, 4, v112
    v_lshl_add_u32 v112, v3, 2, v112
    v_mul_u32_u24 v113, 2304, v3
    v_lshl_add_u32 v113, v4, 3, v113
    s_lshl_b32 s58, s3, 7
    s_add_u32 s58, s58, {XG}
    s_lshl_b32 s64, s22, 1
    s_sub_u32 s67, s60, 1            ; local
    s_and_b32 s66, s2, 1
    s_lshl2_add_u32 s65, s66, s67    ; r
    s_add_u32 s66, s66, 16           ; slot
    s_mov_b32 s74, 2''')
    zero_flags()
    for p in range(4):
        a(f's_waitcnt vmcnt({7-2*p})')
        for d in range(4):
            a(f'v_perm_b32 v{TT+4*(2*d)+p}, v{UB+4*(2*p+1)+d}, v{UB+4*(2*p)+d}, s40')
            a(f'v_perm_b32 v{TT+4*(2*d+1)+p}, v{UB+4*(2*p+1)+d}, v{UB+4*(2*p)+d}, s41')
    a('s_waitcnt vmcnt(0)')
    stamp(1, True)
    a('s_nop 1')
    for j in range(8):
        a(f'v_mfma_f32_16x16x32_bf16 v[{XACC+4*j}:{XACC+4*j+3}], v[12:15], v[{TT+4*j}:{TT+4*j+3}], 0')
    a('''s_mov_b64 exec, s[50:51]
    s_nop 7''')
    for j in range(8):
        a(f'ds_write_b128 v11, v[{XACC+4*j}:{XACC+4*j+3}] offset:{256*j+64*(j>>1)}')
    if stamps:
        a('s_mov_b32 s94, 6')
    a(f'''s_mov_b64 exec, -1
    s_mov_b64 vcc, 0
    s_waitcnt lgkmcnt(0)''')
    if lite:
        stamp(2, True)
    a(f'''s_barrier''')
    if lite:
        stamp(4, True)
    a(f'''s_cmp_eq_u32 s60, 0
    s_cbranch_scc1 X_RED
    s_cmp_eq_u32 s60, 5
    s_cbranch_scc1 END
    s_barrier
    s_branch V_ENTRY''')
    a.label('X_RED')
    mktag(62)
    stamp(2)
    for p in range(18):
        a(f'ds_read2st64_b32 v[{16+2*p}:{17+2*p}], v112 offset0:{8*p} offset1:{8*p+1}')
        if p == 11:
            a('s_waitcnt lgkmcnt(6)')
    a('s_waitcnt lgkmcnt(0)')
    for p in range(1, 18):
        a(f'v_add_f32 v16, v16, v{16+2*p}')
        a(f'v_add_f32 v17, v17, v{17+2*p}')
    a('''v_cvt_pk_bf16_f32 v16, v16, v17
    v_mov_b32 v17, s62
    buffer_store_dwordx2 v[16:17], v113, s[28:31], s58 offen sc1
    s_barrier''')
    stamp(3)
    if stamps and not lite:
        a('s_waitcnt vmcnt(0)')
    stamp(4); stamp(5); stamp(6)
    stamp_store(1)

    a.label('AUX2')
    a('''s_waitcnt lgkmcnt(0)
    s_load_dword s62, s[20:21], 0''')
    srd_lo(a, 36, 18); srd_hi(a, 36, 256)
    a('''s_mov_b64 exec, 1
    v_mov_b32 v10, 0
    v_mov_b32 v13, 1
    s_waitcnt lgkmcnt(0)''')
    mktag(62)
    a('''v_mov_b32 v12, s62
    buffer_store_dwordx2 v[12:13], v10, s[36:39], 0 offen sc1''')
    a.label('END')
    a('s_endpgm')
    if stamps:
        a.label('STAMP_OUT')
        a(f'''s_mov_b32 s95, 0
        s_mov_b64 exec, 1
        s_mov_b64 s[76:77], s[20:21]
        s_mov_b32 s78, 0x10000000
        s_mov_b32 s79, 0x00020000
        s_lshl_b32 s75, s2, 3
        s_add_u32 s75, s75, s59
        s_lshl_b32 s75, s75, 6
        s_add_u32 s75, s75, {STAMP}
        v_mov_b32 v1, 0''')
        for i in range(4):
            a(f'''v_mov_b32 v{4+4*i}, s{80+4*i}
            v_mov_b32 v{5+4*i}, s{81+4*i}
            v_mov_b32 v{6+4*i}, s{82+4*i}
            v_mov_b32 v{7+4*i}, s{83+4*i}
            buffer_store_dwordx4 v[{4+4*i}:{7+4*i}], v1, s[76:79], s75 offen offset:{16*i}''')
        a('s_endpgm')
    a.label('CODE_END')
    a.raw('.section .rodata,"a"')
    a.raw(kd(NAME, 256, 102, 256))
    return a.text()

if __name__ == '__main__':
    import argparse
    ap = argparse.ArgumentParser()
    ap.add_argument('out')
    for k, v in dict(D=8, Dlow=5, K0=0, ppos=27, hp=8, hb=8, vsleep=1, notail=0, rsleep=4, hfirst=12, fdelay=0).items():
        ap.add_argument('--' + k, type=int, default=v)
    for k in ['stamps', 'lite', 'nodep']:
        ap.add_argument('--' + k, action='store_true')
    ap.add_argument('--outflags', default='')
    ap.add_argument('--uflags', default='')
    ap.add_argument('--sflags', default='')
    args = vars(ap.parse_args())
    out = args.pop('out')
    open(out, 'w').write(gen(**args))
```

```python
import sys
from gen_base import A, kernel_begin, kd, HEADER
from gen_fused import VM
NAME = 'standalone__weight_only_int_quip__decode_kernel'

XG = 4096
HG = 16384
YG = 131072
WS_BYTES = YG + 36 * 32768
STAMP = 128 << 20
VROW = 9216
QROW = 18432
SPIN = 200000
FL = 36864
VL = 37888
LDS = VL + 8 * 2048

def srd_hi(a, d, nbytes):
    a(f's_mov_b32 s{d+2}, {nbytes}\ns_mov_b32 s{d+3}, 0x00020000')
def srd_lo(a, d, lo):
    a(f's_mov_b64 s[{d}:{d+1}], s[{lo}:{lo+1}]')

def gen(D=8, Dlow=5, K0=0, ppos=27, stamps=False, lite=False, vflags='nt', qflags='nt', hp=8, hb=8, vsleep=1,
        nodep=False, notail=0, outflags='', rsleep=4, hfirst=12):
    a = A()
    a.raw(HEADER.rstrip('\n'))
    a.raw(f'; @launch grid=(256,1,1) block=(512,1,1) lds={LDS}')
    if stamps:
        a.raw('; wstamps=8')
    a.raw('.amdgcn_target "amdgcn-amd-amdhsa--gfx950"\n.text')
    kernel_begin(a, NAME)

    def stamp(i):
        if stamps and (not lite or i in (3, 6)):
            a(f's_memrealtime s[{80+2*i}:{81+2*i}]')
            a('s_waitcnt lgkmcnt(0)')
    def stamp_store(role):
        if stamps:
            if role is not None:
                a(f's_mov_b32 s94, {role}')
            a('s_branch STAMP_OUT')
        else:
            a('s_endpgm')
    def mktag(s):
        a(f'''s_and_b32 s61, s{s}, 0x7f7f7f7f
        s_add_u32 s61, s61, 0x01010101
        s_and_b32 s{s}, s{s}, 0x80808080
        s_xor_b32 s{s}, s{s}, s61''')
    def tagcheck(regs, tw, extra=None):
        for i, r in enumerate(regs):
            a(f'v_cmp_ne_u32 s[{48+2*(i%4)}:{49+2*(i%4)}], v{r}, {tw}')
            if i >= 4:
                a(f's_or_b64 s[56:57], s[56:57], s[{48+2*(i%4)}:{49+2*(i%4)}]')
            if i == 3:
                a('s_or_b64 s[48:49], s[48:49], s[50:51]')
                a('s_or_b64 s[52:53], s[52:53], s[54:55]')
                if extra:
                    a(extra)
                    a('s_or_b64 s[48:49], s[48:49], vcc')
                a('s_or_b64 s[56:57], s[48:49], s[52:53]')
    def zero_flags():
        a(f'''v_lshlrev_b32 v5, 2, v4
        v_mov_b32 v6, 0
        ds_write_b32 v5, v6 offset:{FL}''')

    if stamps:
        a('s_memrealtime s[80:81]')
    a(f'''s_load_dwordx16 s[4:19], s[0:1], 0
    s_load_dwordx2 s[20:21], s[0:1], 64
    v_readfirstlane_b32 s59, v0
    v_and_b32 v2, 63, v0             ; lane
    s_cmpk_ge_u32 s2, 256
    s_cbranch_scc1 END
    s_lshr_b32 s59, s59, 6
    s_cbranch_scc0 AUX
    v_lshrrev_b32 v3, 4, v2          ; kg
    v_and_b32 v4, 15, v2             ; n / m
    s_cmp_lt_u32 s2, 18
    s_cbranch_scc1 ROLE_X
    s_cmpk_lt_u32 s2, 162
    s_cbranch_scc1 ROLE_A
    s_cmpk_ge_u32 s2, 252
    s_cbranch_scc1 ROLE_L
    s_sub_u32 s3, s2, 162
    s_mul_hi_u32 s64, s3, {-(-(1<<32)//5)}     ; cp
    s_mul_i32 s60, s64, 5
    s_sub_u32 s60, s3, s60           ; i
    s_add_u32 s66, s60, 9            ; slot
    s_mul_i32 s65, s60, 7
    s_add_u32 s65, s65, 35
    s_add_u32 s65, s65, s59          ; r = 36 + 7i + (w-1)
    s_sub_u32 s67, s59, 1
    s_mov_b32 s74, 5
    s_mov_b64 vcc, -1''')
    if stamps:
        a('s_mov_b32 s94, 5')
    a.label('V_ENTRY')
    vm = VM(a)
    RING = 16
    NR = D + 2
    assert RING + 4 * NR <= 56
    P = 56
    TW = 10
    T = 64
    AB = [192, 208]
    ACC = 224
    OUT = 232
    TB = 240
    a(f'''s_lshr_b32 s42, s65, 1           ; kb
    s_and_b32 s43, s65, 1
    s_lshl1_add_u32 s43, s64, s43    ; cgp
    v_mul_u32_u24 v8, {8*VROW}, v3
    v_lshl_add_u32 v8, v4, 4, v8     ; V voffset
    s_mul_i32 s44, s42, {128*VROW}
    s_lshl_b32 s45, s43, 8
    s_add_u32 s44, s44, s45          ; V soffset
    s_movk_i32 s45, {VROW}''')
    srd_hi(a, 24, 4608 * 4608 * 2)
    a('s_waitcnt lgkmcnt(0)')
    srd_lo(a, 24, 14)
    state = {'row': 0}
    def vload(k):
        s, i = divmod(k, 8)
        row = 32 * s + i
        if row == state['row'] + 1:
            a('s_add_u32 s44, s44, s45')
        elif row != state['row']:
            a(f's_add_u32 s44, s44, {(row - state["row"]) * VROW}')
        state['row'] = row
        r = RING + 4 * (k % NR)
        if Dlow < D and k - Dlow >= 0 and f'L{k-Dlow}' in vm.q:
            n = len(vm.q) - 1 - vm.q.index(f'L{k-Dlow}')
            if k >= K0:
                a(f's_cbranch_vccz VD{k}')
            a(f's_waitcnt vmcnt({n})')
            a.label(f'VD{k}')
        vm.issue(f'L{k}', f'buffer_load_dwordx4 v[{r}:{r+3}], v8, s[24:27], s44 offen {vflags}')
    nxt = 0
    while nxt < min(D, Dlow):
        vload(nxt)
        nxt += 1
    a('s_branch V_MAIN')

    a.label('AUX')
    a(f'''s_getpc_b64 s[64:65]
PC0:
    s_mov_b32 s66, CODE_END-PC0
    s_mov_b32 s67, 0x00020000
    v_lshlrev_b32 v1, 7, v2
    buffer_load_dword v4, v1, s[64:67], 0 offen offset:512
    s_lshr_b32 s42, s2, 3
    s_mul_i32 s42, s42, {18*1152}
    s_and_b32 s43, s2, 7
    v_and_b32 v3, 31, v2
    v_mul_u32_u24 v3, 1152, v3
    s_lshl_b32 s44, s43, 7
    v_mov_b32 v6, s44
    v_mov_b32 v7, 1024
    v_cmp_gt_u32 vcc, 32, v2
    s_cmp_lt_u32 s43, 2
    s_mov_b32 s44, 0x3ffff
    s_cselect_b32 s45, s44, 0
    v_cndmask_b32 v6, v7, v6, vcc
    v_add_u32 v3, v3, v6''')
    srd_hi(a, 24, 576 * 576 * 2)
    a('''s_mov_b64 exec, s[44:45]
    s_waitcnt lgkmcnt(0)''')
    srd_lo(a, 24, 12)
    a('''buffer_load_dword v8, v3, s[24:27], s42 offen
    s_branch AUX2''')

    a.label('ROLE_X')
    UB = 16; TT = 48; XACC = 80
    a(f'''s_cmp_eq_u32 s59, 7
    s_cbranch_scc1 END
    s_sub_u32 s60, s59, 1            ; xw 0..5
    v_lshrrev_b32 v5, 2, v4          ; c (also c')
    v_min_u32 v6, 2, v5
    v_and_b32 v7, 3, v4              ; n' (also b)
    v_lshlrev_b32 v8, 5, v6
    v_lshl_add_u32 v8, v3, 3, v8     ; 32c + 8kg
    v_mul_u32_u24 v9, 1152, v8
    v_lshl_add_u32 v9, v7, 4, v9     ; U voffset
    s_and_b32 s3, s2, 7
    s_lshr_b32 s45, s2, 3
    s_lshl1_add_u32 s3, s3, s45
    s_cmp_lt_u32 s2, 16
    s_cselect_b32 s3, s3, s2
    s_lshl_b32 s44, s3, 6
    s_mul_i32 s45, s60, {96*1152}
    s_add_u32 s44, s44, s45
    s_add_u32 s47, s44, 4608
    v_mul_u32_u24 v10, 1152, v7
    v_lshl_add_u32 v10, v8, 1, v10   ; x voffset
    s_mul_i32 s45, s60, 192''')
    srd_hi(a, 24, 576 * 576 * 2)
    srd_hi(a, 32, 4 * 576 * 2)
    a('s_waitcnt lgkmcnt(0)')
    srd_lo(a, 24, 12)
    srd_lo(a, 32, 4)
    for i in range(8):
        a(f'buffer_load_dwordx4 v[{UB+4*i}:{UB+4*i+3}], v9, s[24:27], s{44 if i < 4 else 47} offen offset:{(i%4)*1152}')
    a('buffer_load_dwordx4 v[12:15], v10, s[32:35], s45 offen')
    a('s_branch X_MAIN')

    a.label('ROLE_A')
    a(f'''s_sub_u32 s3, s2, 18
    s_cmp_ge_u32 s59, 4
    s_cbranch_scc1 A_V''')
    hm = VM(a)
    Q = 32; SZ = 16; SC = 128; W = 144; HACC = 192; HP = 208; AOP = 224
    a(f'''s_setprio 3
    s_sub_u32 s60, s59, 1            ; hw
    v_lshrrev_b32 v5, 3, v4          ; c
    v_and_b32 v6, 7, v4              ; n'
    v_lshlrev_b32 v7, 2, v5
    v_add_u32 v7, v7, v3             ; 4c + kg
    v_mul_u32_u24 v7, {8*QROW}, v7
    v_lshl_add_u32 v7, v6, 4, v7
    s_mul_i32 s44, s60, {192*QROW}
    s_lshl_b32 s45, s3, 7
    s_add_u32 s44, s44, s45
    s_movk_i32 s45, {QROW}''')
    srd_hi(a, 24, 576 * 4608 * 4)
    a('s_waitcnt lgkmcnt(0)')
    srd_lo(a, 24, 6)
    def qload(k):
        s, i = divmod(k, 8)
        r = Q + 32 * s + 4 * i
        hm.issue(f'Q{s}_{i}', f'buffer_load_dwordx4 v[{r}:{r+3}], v7, s[24:27], s44 offen {qflags}')
        if i < 7:
            a('s_add_u32 s44, s44, s45')
        elif s < 2:
            a(f's_add_u32 s44, s44, {57*QROW}')
    for k in range(hfirst):
        qload(k)
    a.label('FIRST_KB_END')
    a(f'''s_load_dword s62, s[20:21], 0    ; epoch
    v_mul_u32_u24 v8, 9216, v5
    v_lshl_add_u32 v8, v6, 3, v8
    s_mul_i32 s46, s60, {6*9216}
    s_lshl_b32 s47, s3, 6
    s_add_u32 s46, s46, s47''')
    srd_lo(a, 32, 8); srd_hi(a, 32, 18 * 4608 * 2)
    srd_lo(a, 36, 10); srd_hi(a, 36, 18 * 4608 * 2)
    for s in range(3):
        hm.issue(f'S{s}', f'buffer_load_dwordx2 v[{SZ+4*s}:{SZ+4*s+1}], v8, s[32:35], s46 offen')
        hm.issue(f'Z{s}', f'buffer_load_dwordx2 v[{SZ+4*s+2}:{SZ+4*s+3}], v8, s[36:39], s46 offen')
        if s < 2:
            a('s_add_u32 s46, s46, s45')
    for k in range(hfirst, 24):
        qload(k)
    srd_lo(a, 28, 20); srd_hi(a, 28, WS_BYTES)
    srd_lo(a, 32, 16); srd_hi(a, 32, 4 * 4608 * 2)
    a(f'''s_mov_b32 s46, {SPIN}
    v_and_b32 v9, 3, v4              ; b
    v_mul_u32_u24 v9, 2304, v9
    v_lshl_add_u32 v9, v3, 5, v9     ; + 8kg*4
    v_lshrrev_b32 v10, 2, v4         ; ch
    v_and_b32 v11, 1, v10
    v_lshl_add_u32 v11, v11, 7, v9
    v_lshl_add_u32 v9, v10, 7, v9
    s_mul_i32 s47, s60, 768
    s_add_u32 s47, s47, {XG}
    v_lshlrev_b32 v12, 10, v5
    v_lshl_add_u32 v12, v6, 4, v12
    s_lshl_b32 s58, s60, 11
    v_add_u32 v12, s58, v12
    v_and_b32 v13, 1, v2
    v_lshlrev_b32 v13, 9, v13
    v_bfe_u32 v14, v2, 1, 3
    v_lshl_add_u32 v13, v14, 4, v13
    v_lshl_add_u32 v13, v3, 2, v13
    v_mul_u32_u24 v14, 18432, v3
    v_lshl_add_u32 v14, v4, 3, v14
    s_lshl_b32 s58, s3, 7
    s_add_u32 s58, s58, {HG}
    s_lshl_b32 s61, s60, 2
    v_mov_b32 v15, s61''')
    zero_flags()
    a('s_waitcnt lgkmcnt(0)')
    mktag(62)
    def hpoll(track=True):
        ops = [('P0', f'buffer_load_dwordx4 v[{HP}:{HP+3}], v9, s[28:31], s47 offen sc1'),
               ('P1', f'buffer_load_dwordx4 v[{HP+4}:{HP+7}], v9, s[28:31], s47 offen offset:16 sc1'),
               ('P2', f'buffer_load_dwordx4 v[{HP+8}:{HP+11}], v11, s[28:31], s47 offen offset:512 sc1'),
               ('P3', f'buffer_load_dwordx4 v[{HP+12}:{HP+15}], v11, s[28:31], s47 offen offset:528 sc1')]
        for n, t in ops:
            if track:
                hm.issue(n, t)
            else:
                a(t)
    def hevents(pi):
        if pi == hp:
            hpoll()
        if pi == hb:
            a('s_barrier')
    for s in range(3):
        hm.wait(f'Z{s}')
        sreg = SZ + 4 * s
        zreg = SZ + 4 * s + 2
        for j in range(4):
            if j % 2 == 0:
                a(f'v_lshlrev_b32 v{SC+j}, 16, v{sreg+j//2}')
                a(f'v_lshlrev_b32 v{SC+4+j}, 16, v{zreg+j//2}')
            else:
                a(f'v_and_b32 v{SC+j}, 0xffff0000, v{sreg+j//2}')
                a(f'v_and_b32 v{SC+4+j}, 0xffff0000, v{zreg+j//2}')
            a(f'v_mul_f32 v{SC+4+j}, v{SC+4+j}, v{SC+j}')
        for p in range(4):
            hevents(4 * s + p)
            hm.wait(f'Q{s}_{2*p+1}')
            for i in (2 * p, 2 * p + 1):
                for j in range(4):
                    r = Q + 32 * s + 4 * i + j
                    a(f'v_cvt_f32_i32 v{r}, v{r}')
                for j in range(4):
                    r = Q + 32 * s + 4 * i + j
                    a(f'v_fma_f32 v{r}, v{r}, v{SC+j}, -v{SC+4+j}')
            for j in range(4):
                a(f'v_cvt_pk_bf16_f32 v{W+16*s+4*j+p}, v{Q+32*s+4*(2*p)+j}, v{Q+32*s+4*(2*p+1)+j}')
    hevents(12)
    stamp(1)
    hm.wait('P3')
    htags = [HP + 1 + 2 * i for i in range(8)]
    tagcheck(htags, 's62')
    if not nodep:
        a('s_cbranch_scc1 H_RETRY')
    a.label('H_GOT')
    stamp(2)
    for k, src in enumerate([HP, HP+2, HP+4, HP+6]):
        a(f'v_mov_b32 v{AOP+k}, v{src}')
        a(f'v_mov_b32_dpp v{AOP+4+k}, v{src} row_shl:8 row_mask:0xf bank_mask:0xf bound_ctrl:0')
        a(f'v_mov_b32 v{AOP+8+k}, v{src+8}')
    a('s_nop 1')
    for s in range(3):
        for j in range(4):
            c = '0' if s == 0 else f'v[{HACC+4*j}:{HACC+4*j+3}]'
            a(f'v_mfma_f32_16x16x32_bf16 v[{HACC+4*j}:{HACC+4*j+3}], v[{AOP+4*s}:{AOP+4*s+3}], v[{W+16*s+4*j}:{W+16*s+4*j+3}], {c}')
    a('''s_mov_b32 s48, 0xff0000ff
    s_mov_b32 s49, 0
    v_mov_b32 v16, 1
    s_mov_b64 exec, s[48:49]
    s_nop 4''')
    for j in range(4):
        a(f'ds_write_b128 v12, v[{HACC+4*j}:{HACC+4*j+3}] offset:{256*j}')
    a(f'''s_mov_b64 exec, -1
    v_mov_b32 v17, {FL}
    s_cmp_lg_u32 s60, 0
    s_cbranch_scc1 REDUCER''')
    a.label('H_SPIN')
    a('''ds_read2_b32 v[18:19], v17 offset0:9 offset1:10
    s_waitcnt lgkmcnt(0)
    v_and_b32 v18, v18, v19
    v_cmp_ne_u32 vcc, 1, v18
    s_cbranch_vccz H_RDY
    s_sub_u32 s46, s46, 1
    s_cmp_lg_u32 s46, 0
    s_cbranch_scc1 H_SPIN''')
    a.label('H_RDY')
    stamp(3)
    for p in range(6):
        a(f'ds_read2st64_b32 v[{20+2*p}:{21+2*p}], v13 offset0:{4*p} offset1:{4*p+1}')
    a('s_waitcnt lgkmcnt(0)')
    for p in range(1, 6):
        a(f'v_add_f32 v20, v20, v{20+2*p}')
        a(f'v_add_f32 v21, v21, v{21+2*p}')
    a('''v_cvt_pk_bf16_f32 v20, v20, v21
    v_mov_b32 v21, s62
    buffer_store_dwordx2 v[20:21], v14, s[28:31], s58 offen sc1''')
    stamp(4)
    if stamps and not lite:
        a('s_waitcnt vmcnt(0)')
    stamp(5); stamp(6)
    stamp_store(2)
    a.label('H_RETRY')
    a('s_sleep 1')
    hpoll(False)
    a('s_waitcnt vmcnt(0)')
    tagcheck(htags, 's62')
    a('''s_cbranch_scc0 H_GOT
    s_sub_u32 s46, s46, 1
    s_cmp_lg_u32 s46, 0
    s_cbranch_scc1 H_RETRY
    s_branch H_GOT''')

    a.label('REDUCER')
    R = 32; RT = 24
    a(f'''ds_write_b32 v15, v16 offset:{FL+32}
    s_setprio 0
    s_lshr_b32 s42, s3, 3
    s_lshl1_add_u32 s42, s42, s60
    s_sub_u32 s42, s42, 1
    s_and_b32 s43, s3, 7
    s_lshl_b32 s68, s42, 15
    s_lshl_b32 s70, s43, 8
    s_add_u32 s68, s68, s70
    s_add_u32 s68, s68, {YG}
    v_lshlrev_b32 v14, 11, v3
    v_lshl_add_u32 v14, v4, 4, v14   ; pg*2048 + n*16
    v_mul_u32_u24 v15, 9216, v3
    v_lshl_add_u32 v15, v4, 4, v15
    s_lshl_b32 s72, s42, 8
    s_lshl1_add_u32 s72, s43, s72
    s_cmp_eq_u32 s60, 2
    s_cselect_b32 s75, 0xffff, 0
    s_and_b32 s70, s62, 0xff
    v_mov_b32 v{RT}, s70
    s_bfe_u32 s70, s62, 0x80008
    v_mov_b32 v{RT+1}, s70
    s_bfe_u32 s70, s62, 0x80010
    v_mov_b32 v{RT+2}, s70
    s_lshr_b32 s70, s62, 24
    v_mov_b32 v{RT+3}, s70''')
    for k in range(4):
        a(f'v_mov_b32 v{R+12+k}, v{RT+k}')
    a('s_mov_b32 s73, 15')
    stamp(3)
    if notail:
        stamp(6)
        stamp_store(3)
    a.label('R_WAIT')
    a(f'''s_sleep {rsleep}
    ds_read_b32 v18, v17
    s_waitcnt lgkmcnt(0)
    v_cmp_ne_u32 vcc, 1, v18
    s_cbranch_vccz R_POLL
    s_sub_u32 s46, s46, 1
    s_cmp_lg_u32 s46, 0
    s_cbranch_scc1 R_WAIT''')
    a.label('R_POLL')
    for q in range(4):
        a(f'''s_bitcmp1_b32 s73, {q}
        s_cbranch_scc0 R_S{q}
        s_add_u32 s70, s68, {q*8192}''')
        if q == 3:
            a('s_mov_b32 exec_hi, s75')
        a(f'buffer_load_dwordx4 v[{R+4*q}:{R+4*q+3}], v14, s[28:31], s70 offen sc1')
        if q == 3:
            a('s_mov_b32 exec_hi, -1')
        a.label(f'R_S{q}')
    a('s_mov_b32 s73, 0')
    a('s_waitcnt vmcnt(0)')
    for q in range(4):
        a(f'''v_xor_b32 v16, v{R+4*q}, v{RT}
        v_bitop3_b32 v16, v16, v{R+4*q+1}, v{RT+1} bitop3:0xf6
        v_bitop3_b32 v16, v16, v{R+4*q+2}, v{RT+2} bitop3:0xf6
        v_bitop3_b32 v16, v16, v{R+4*q+3}, v{RT+3} bitop3:0xf6
        v_and_b32 v16, 0xff, v16
        v_cmp_ne_u32 vcc, 0, v16
        s_cmp_lg_u64 vcc, 0
        s_cselect_b32 s70, {1<<q}, 0
        s_or_b32 s73, s73, s70''')
    if nodep:
        a('s_branch R_OK')
    a(f'''s_cbranch_scc0 R_OK
    s_sub_u32 s46, s46, 1
    s_cmp_lg_u32 s46, 0
    s_cbranch_scc1 R_POLL''')
    a.label('R_OK')
    stamp(5)
    for q in range(4):
        for k in range(4):
            a(f'v_xor_b32 v{R+4*q+k}, v{R+4*q+k}, v{RT+k}')
    for k in range(4):
        a(f'v_add_f32 v{R+k}, v{R+k}, v{R+4+k}')
        a(f'v_add_f32 v{R+8+k}, v{R+8+k}, v{R+12+k}')
    for k in range(4):
        a(f'v_add_f32 v{R+k}, v{R+k}, v{R+8+k}')
    a(f'''s_nop 1
    v_permlane16_swap_b32 v{R}, v{R+1}
    v_permlane16_swap_b32 v{R+2}, v{R+3}
    s_nop 1
    v_add_f32 v{R}, v{R}, v{R+1}
    v_add_f32 v{R+2}, v{R+2}, v{R+3}
    s_nop 1
    v_permlane32_swap_b32 v{R}, v{R+2}
    s_nop 1
    v_add_f32 v{R}, v{R}, v{R+2}
    v_cvt_pk_bf16_f32 v{R}, v{R}, v{R}
    buffer_store_short v{R}, v15, s[32:35], s72 offen {outflags}
    s_cmp_lg_u32 s72, 0
    s_cbranch_scc1 R_FIN
    s_mov_b64 exec, 1
    v_mov_b32 v16, s62
    v_mov_b32 v17, 0
    buffer_store_dword v16, v17, s[28:31], 0 offen sc1''')
    a.label('R_FIN')
    stamp(6)
    stamp_store(3)

    a.label('V_MAIN')
    def poll_issue(track=True):
        ops = [('PT', f'buffer_load_dwordx2 v[{TW}:{TW+1}], v12, s[36:39], 0 offen sc1'),
               ('P0', f'buffer_load_dwordx4 v[{P}:{P+3}], v9, s[28:31], s47 offen sc1'),
               ('P1', f'buffer_load_dwordx4 v[{P+4}:{P+7}], v9, s[28:31], s47 offen offset:16 sc1')]
        for n, t in ops:
            if track:
                vm.issue(n, t)
            else:
                a(t)
    def perms(q):
        s, p = divmod(q, 4)
        r0 = RING + 4 * ((2 * q) % NR)
        r1 = RING + 4 * ((2 * q + 1) % NR)
        for d in range(4):
            a(f'v_perm_b32 v{T+32*s+4*(2*d)+p}, v{r1+d}, v{r0+d}, s40')
            a(f'v_perm_b32 v{T+32*s+4*(2*d+1)+p}, v{r1+d}, v{r0+d}, s41')
    def abuild(s, buf):
        for g in range(4):
            if s > g:
                m = f'row_shl:{4*(s-g)}'
            elif s < g:
                m = f'row_shr:{4*(g-s)}'
            else:
                m = 'quad_perm:[0,1,2,3]'
            for k, src in enumerate([P, P+2, P+4, P+6]):
                a(f'v_mov_b32_dpp v{buf+4*g+k}, v{src} {m} row_mask:0xf bank_mask:{1<<g:#x}')
    def mfmas(s, buf):
        for j in [0, 4, 1, 5, 2, 6, 3, 7]:
            ac = ACC + 4 * (j >> 2)
            g = j & 3
            c = '0' if (s == 0 and g == 0) else f'v[{ac}:{ac+3}]'
            a(f'v_mfma_f32_16x16x32_bf16 v[{ac}:{ac+3}], v[{buf+4*g}:{buf+4*g+3}], v[{T+32*s+4*j}:{T+32*s+4*j+3}], {c}')
    a('s_cbranch_vccz V_NOBAR')
    zero_flags()
    a('''s_waitcnt lgkmcnt(0)
    s_barrier''')
    a.label('V_NOBAR')
    srd_lo(a, 28, 20); srd_hi(a, 28, WS_BYTES)
    srd_lo(a, 36, 18); srd_hi(a, 36, 256)
    a(f'''s_mov_b32 s40, 0x05040100
    s_mov_b32 s41, 0x07060302
    s_mov_b32 s46, {SPIN}
    v_and_b32 v9, 3, v4              ; b
    v_mul_u32_u24 v9, 18432, v9
    v_lshrrev_b32 v12, 2, v4         ; s'
    v_lshl_add_u32 v9, v12, 7, v9
    v_lshl_add_u32 v9, v3, 5, v9
    v_mov_b32 v12, 0
    s_lshl_b32 s47, s42, 9
    s_add_u32 s47, s47, {HG}
    v_lshlrev_b32 v13, 4, v2
    s_lshl_b32 s69, s43, 4
    s_add_u32 s69, s69, s66
    s_lshl_b32 s69, s69, 11
    s_add_u32 s69, s69, {YG}
    s_movk_i32 s71, 0xff
    s_lshl_b32 s70, s67, 11
    v_add_u32 v14, s70, v13
    s_and_b32 s70, s67, 1
    s_lshl_b32 s70, s70, 4
    s_lshr_b32 s72, s67, 1
    v_mov_b32 v15, s70''')
    for r in range(32):
        a(f'v_mov_b32 v{AB[0]+r}, 0')
    landed = -1
    pq = 0
    def do_perms():
        nonlocal pq
        while 2 * pq + 1 <= landed:
            perms(pq)
            pq += 1
    while nxt < 32:
        need = nxt - D
        if need > landed:
            vm.wait(f'L{need}')
            landed = need
        while nxt < 32 and nxt - D <= landed and (nxt - NR < 0 or (nxt - NR) // 2 < pq):
            if nxt == ppos:
                poll_issue()
            vload(nxt)
            nxt += 1
        do_perms()
    if ppos >= 32:
        poll_issue()
    stamp(1)
    while 2 * pq + 1 < min(ppos, 32):
        vm.wait(f'L{2*pq+1}')
        landed = 2 * pq + 1
        do_perms()
    vm.wait('P1')
    landed = max(landed, min(ppos, 32) - 1)
    tagcheck([P+1, P+3, P+5, P+7], f'v{TW}', f'v_cmp_ne_u32 vcc, 1, v{TW+1}')
    if not nodep:
        a('s_cbranch_scc1 V_RETRY')
    a.label('V_GOT')
    stamp(2)
    assert pq // 4 >= 3
    for s in range(3):
        abuild(s, AB[0])
        a('s_nop 1')
        mfmas(s, AB[0])
    abuild(3, AB[1])
    a(f'''v_mov_b32 v{TB}, v{TW}
    v_lshrrev_b32 v{TB+1}, 8, v{TW}
    v_lshrrev_b32 v{TB+2}, 16, v{TW}
    v_lshrrev_b32 v{TB+3}, 24, v{TW}''')
    while pq < 16:
        vm.wait(f'L{2*pq+1}')
        landed = 2 * pq + 1
        do_perms()
    stamp(3)
    a('s_nop 1')
    mfmas(3, AB[1])
    if notail == 1:
        a('s_branch V_FIN')
    a(f'''s_cmp_ge_u32 s67, s74
    s_cbranch_scc1 V_DES
    s_lshl_b32 s72, s72, 2
    v_add_u32 v15, s72, v15
    v_mov_b32 v16, 1
    s_nop 2
    ds_write_b128 v14, v[{ACC}:{ACC+3}] offset:{VL}
    ds_write_b128 v14, v[{ACC+4}:{ACC+7}] offset:{VL+1024}
    ds_write_b32 v15, v16 offset:{FL}''')
    a.label('V_FIN')
    stamp(4); stamp(5); stamp(6)
    stamp_store(None)
    PR = T
    a.label('V_DES')
    a(f'''s_cmp_eq_u32 s72, 0
    s_cbranch_scc1 V_PUB0''')
    a.label('V_DRETRY')
    a(f'''ds_read_b128 v[16:19], v15 offset:{FL}
    ds_read_b128 v[{PR}:{PR+3}], v14 offset:{VL-4096}
    ds_read_b128 v[{PR+4}:{PR+7}], v14 offset:{VL-4096+1024}
    s_cmp_eq_u32 s72, 1
    s_cbranch_scc1 V_DWAIT
    ds_read_b128 v[{PR+8}:{PR+11}], v14 offset:{VL-8192}
    ds_read_b128 v[{PR+12}:{PR+15}], v14 offset:{VL-8192+1024}
    s_cmp_eq_u32 s72, 2
    s_cbranch_scc1 V_DWAIT
    ds_read_b128 v[{PR+16}:{PR+19}], v14 offset:{VL-12288}
    ds_read_b128 v[{PR+20}:{PR+23}], v14 offset:{VL-12288+1024}''')
    a.label('V_DWAIT')
    a(f'''s_waitcnt lgkmcnt(0)
    v_add3_u32 v16, v16, v17, v18
    v_cmp_ne_u32 vcc, s72, v16
    s_cbranch_vccz V_DOK
    s_sub_u32 s46, s46, 1
    s_cmp_lg_u32 s46, 0
    s_cbranch_scc1 V_DRETRY''')
    a.label('V_DOK')
    for pi in range(3):
        for k in range(8):
            a(f'v_add_f32 v{ACC+k}, v{ACC+k}, v{PR+8*pi+k}')
        if pi < 2:
            a(f'''s_cmp_eq_u32 s72, {pi+1}
            s_cbranch_scc1 V_PUB''')
    a('s_branch V_PUB')
    a.label('V_PUB0')
    a('s_nop 4')
    a.label('V_PUB')
    for k in range(4):
        a(f'v_bfi_b32 v{OUT+k}, s71, v{TB+k}, v{ACC+k}')
    a(f'buffer_store_dwordx4 v[{OUT}:{OUT+3}], v13, s[28:31], s69 offen sc1')
    for k in range(4):
        a(f'v_bfi_b32 v{OUT+4+k}, s71, v{TB+k}, v{ACC+4+k}')
    a(f'buffer_store_dwordx4 v[{OUT+4}:{OUT+7}], v13, s[28:31], s69 offen offset:1024 sc1')
    stamp(4)
    if stamps and not lite:
        a('s_waitcnt vmcnt(0)')
    stamp(5); stamp(6)
    if stamps:
        a('s_add_u32 s94, s94, 10')
    stamp_store(None)
    a.label('V_RETRY')
    a(f's_sleep {vsleep}')
    poll_issue(False)
    a('s_waitcnt vmcnt(0)')
    tagcheck([P+1, P+3, P+5, P+7], f'v{TW}', f'v_cmp_ne_u32 vcc, 1, v{TW+1}')
    a('''s_cbranch_scc0 V_GOT
    s_sub_u32 s46, s46, 1
    s_cmp_lg_u32 s46, 0
    s_cbranch_scc1 V_RETRY
    s_branch V_GOT''')

    a.label('A_V')
    a(f'''s_lshr_b32 s64, s3, 3            ; cp
    s_and_b32 s60, s3, 7             ; i
    s_add_u32 s66, s60, 1            ; slot
    s_sub_u32 s67, s59, 4            ; local
    s_cmp_eq_u32 s60, 3
    s_cselect_b32 s74, 1, 2
    s_add_u32 s61, s74, 2
    s_cmp_ge_u32 s67, s61
    s_cbranch_scc1 END
    s_lshl2_add_u32 s65, s60, s67
    s_cmp_gt_u32 s60, 3
    s_cselect_b32 s61, 4, 5
    s_add_u32 s65, s65, s61          ; r
    s_mov_b64 vcc, 0''')
    if stamps:
        a('s_mov_b32 s94, 4')
    a('''s_barrier
    s_branch V_ENTRY''')
    a.label('ROLE_L')
    a(f'''s_sub_u32 s3, s2, 252
    s_mul_i32 s64, s3, 5
    s_add_u32 s64, s64, s59
    s_sub_u32 s64, s64, 1            ; cp
    s_cmp_gt_u32 s59, 5
    s_cbranch_scc1 END
    s_cmp_ge_u32 s64, 18
    s_cbranch_scc1 END
    s_movk_i32 s65, 71
    s_mov_b32 s66, 14
    s_mov_b32 s67, 0
    s_mov_b32 s74, 0
    s_mov_b64 vcc, 0''')
    if stamps:
        a('s_mov_b32 s94, 7')
    a('s_branch V_ENTRY')

    a.label('X_MAIN')
    a('s_load_dword s62, s[20:21], 0    ; epoch')
    srd_lo(a, 28, 20); srd_hi(a, 28, WS_BYTES)
    a(f'''s_mov_b32 s40, 0x05040100
    s_mov_b32 s41, 0x07060302
    s_mul_i32 s45, s60, 3
    v_add_u32 v11, s45, v5
    v_lshlrev_b32 v11, 11, v11
    v_lshl_add_u32 v11, v7, 4, v11
    v_cmp_eq_u32 s[50:51], v3, v5
    v_cmp_gt_u32 vcc, 3, v5
    s_and_b64 s[50:51], s[50:51], vcc
    v_mul_u32_u24 v112, 576, v7
    v_lshl_add_u32 v112, v5, 4, v112
    v_lshl_add_u32 v112, v3, 2, v112
    v_mul_u32_u24 v113, 2304, v3
    v_lshl_add_u32 v113, v4, 3, v113
    s_lshl_b32 s58, s3, 7
    s_add_u32 s58, s58, {XG}
    s_mov_b32 s64, s2                ; cp
    s_sub_u32 s65, s60, 1            ; r = local
    s_mov_b32 s67, s65
    s_mov_b32 s66, 0
    s_mov_b32 s74, 3''')
    zero_flags()
    for p in range(4):
        a(f's_waitcnt vmcnt({7-2*p})')
        for d in range(4):
            a(f'v_perm_b32 v{TT+4*(2*d)+p}, v{UB+4*(2*p+1)+d}, v{UB+4*(2*p)+d}, s40')
            a(f'v_perm_b32 v{TT+4*(2*d+1)+p}, v{UB+4*(2*p+1)+d}, v{UB+4*(2*p)+d}, s41')
    a('s_waitcnt vmcnt(0)')
    stamp(1)
    a('s_nop 1')
    for j in range(8):
        a(f'v_mfma_f32_16x16x32_bf16 v[{XACC+4*j}:{XACC+4*j+3}], v[12:15], v[{TT+4*j}:{TT+4*j+3}], 0')
    a('''s_mov_b64 exec, s[50:51]
    s_nop 7''')
    for j in range(8):
        a(f'ds_write_b128 v11, v[{XACC+4*j}:{XACC+4*j+3}] offset:{256*j+64*(j>>1)}')
    if stamps:
        a('s_mov_b32 s94, 6')
    a(f'''s_mov_b64 exec, -1
    s_mov_b64 vcc, 0
    s_waitcnt lgkmcnt(0)
    s_barrier
    s_cmp_eq_u32 s60, 0
    s_cbranch_scc1 X_RED
    s_barrier
    s_branch V_ENTRY''')
    a.label('X_RED')
    mktag(62)
    stamp(2)
    for p in range(18):
        a(f'ds_read2st64_b32 v[{16+2*p}:{17+2*p}], v112 offset0:{8*p} offset1:{8*p+1}')
        if p == 11:
            a('s_waitcnt lgkmcnt(6)')
    a('s_waitcnt lgkmcnt(0)')
    for p in range(1, 18):
        a(f'v_add_f32 v16, v16, v{16+2*p}')
        a(f'v_add_f32 v17, v17, v{17+2*p}')
    a('''v_cvt_pk_bf16_f32 v16, v16, v17
    v_mov_b32 v17, s62
    buffer_store_dwordx2 v[16:17], v113, s[28:31], s58 offen sc1
    s_barrier''')
    stamp(3)
    if stamps and not lite:
        a('s_waitcnt vmcnt(0)')
    stamp(4); stamp(5); stamp(6)
    stamp_store(1)

    a.label('AUX2')
    a('''s_mov_b64 exec, -1
    v_add_u32 v1, 8192, v1
    buffer_load_dword v5, v1, s[64:67], 0 offen offset:512
    s_cmp_lg_u32 s2, 0
    s_cbranch_scc1 END
    s_load_dword s62, s[20:21], 0''')
    srd_lo(a, 36, 18); srd_hi(a, 36, 256)
    a('''s_mov_b64 exec, 1
    v_mov_b32 v10, 0
    v_mov_b32 v13, 1
    s_waitcnt lgkmcnt(0)''')
    mktag(62)
    a('''v_mov_b32 v12, s62
    buffer_store_dwordx2 v[12:13], v10, s[36:39], 0 offen sc1''')
    a.label('END')
    a('s_endpgm')
    if stamps:
        a.label('STAMP_OUT')
        a(f'''s_mov_b32 s95, 0
        s_mov_b64 exec, 1
        s_mov_b64 s[76:77], s[20:21]
        s_mov_b32 s78, 0x10000000
        s_mov_b32 s79, 0x00020000
        s_lshl_b32 s75, s2, 3
        s_add_u32 s75, s75, s59
        s_lshl_b32 s75, s75, 6
        s_add_u32 s75, s75, {STAMP}
        v_mov_b32 v1, 0''')
        for i in range(4):
            a(f'''v_mov_b32 v{4+4*i}, s{80+4*i}
            v_mov_b32 v{5+4*i}, s{81+4*i}
            v_mov_b32 v{6+4*i}, s{82+4*i}
            v_mov_b32 v{7+4*i}, s{83+4*i}
            buffer_store_dwordx4 v[{4+4*i}:{7+4*i}], v1, s[76:79], s75 offen offset:{16*i}''')
        a('s_endpgm')
    a.label('CODE_END')
    a.raw('.section .rodata,"a"')
    a.raw(kd(NAME, 256, 102, 256))
    return a.text()

if __name__ == '__main__':
    import argparse
    ap = argparse.ArgumentParser()
    ap.add_argument('out')
    for k, v in dict(D=8, Dlow=5, K0=0, ppos=27, hp=8, hb=8, vsleep=1, notail=0, rsleep=4, hfirst=12).items():
        ap.add_argument('--' + k, type=int, default=v)
    for k in ['stamps', 'lite', 'nodep']:
        ap.add_argument('--' + k, action='store_true')
    ap.add_argument('--outflags', default='')
    args = vars(ap.parse_args())
    out = args.pop('out')
    open(out, 'w').write(gen(**args))
```

```python
import sys
from gen_base import A, kernel_begin, kd, HEADER
from gen_fused import VM
NAME = 'standalone__weight_only_int_quip__decode_kernel'

XG = 4096
HG = 16384
YG = 131072
CG = 20 * 2048
WS_BYTES = YG + 36 * CG
STAMP = 128 << 20
VROW = 9216
QROW = 18432
SPIN = 200000
FL = 36864
VL = 37888
LDS = VL + 8 * 2048

def srd_hi(a, d, nbytes):
    a(f's_mov_b32 s{d+2}, {nbytes}\ns_mov_b32 s{d+3}, 0x00020000')
def srd_lo(a, d, lo):
    a(f's_mov_b64 s[{d}:{d+1}], s[{lo}:{lo+1}]')

def gen(D=8, Dlow=5, K0=0, ppos=27, stamps=False, lite=False, vflags='nt', qflags='nt', hp=8, hb=8, vsleep=1,
        nodep=False, notail=0, outflags='', rsleep=4, hfirst=12, uflags='', sflags='', fdelay=0, cal=''):
    a = A()
    a.raw(HEADER.rstrip('\n'))
    a.raw(f'; @launch grid=(256,1,1) block=(512,1,1) lds={LDS}')
    if stamps:
        a.raw('; wstamps=8')
    a.raw('.amdgcn_target "amdgcn-amd-amdhsa--gfx950"\n.text')
    kernel_begin(a, NAME)

    calw = [int(x) for x in cal.split(',')] if cal else None
    def stamp(i, force=False):
        if calw and i == calw[2]:
            a('s_memrealtime s[96:97]')
            if i != 0:
                a('s_waitcnt lgkmcnt(0)')
        if stamps and (not lite or i in (3, 6) or force):
            a(f's_memrealtime s[{80+2*i}:{81+2*i}]')
            a('s_waitcnt lgkmcnt(0)')
    def stamp_store(role):
        if stamps:
            if role is not None:
                a(f's_mov_b32 s94, {role}')
            a('s_branch STAMP_OUT')
        elif calw:
            a('s_branch CAL_END')
        else:
            a('s_endpgm')
    def mktag(s):
        a(f'''s_and_b32 s61, s{s}, 0x7f7f7f7f
        s_add_u32 s61, s61, 0x01010101
        s_and_b32 s{s}, s{s}, 0x80808080
        s_xor_b32 s{s}, s{s}, s61''')
    def tagcheck(regs, tw, extra=None):
        for i, r in enumerate(regs):
            a(f'v_cmp_ne_u32 s[{48+2*(i%4)}:{49+2*(i%4)}], v{r}, {tw}')
            if i >= 4:
                a(f's_or_b64 s[56:57], s[56:57], s[{48+2*(i%4)}:{49+2*(i%4)}]')
            if i == 3:
                a('s_or_b64 s[48:49], s[48:49], s[50:51]')
                a('s_or_b64 s[52:53], s[52:53], s[54:55]')
                if extra:
                    a(extra)
                    a('s_or_b64 s[48:49], s[48:49], vcc')
                a('s_or_b64 s[56:57], s[48:49], s[52:53]')
    def zero_flags():
        a(f'''v_lshlrev_b32 v5, 2, v4
        v_mov_b32 v6, 0
        ds_write_b32 v5, v6 offset:{FL}''')

    if stamps:
        a('s_memrealtime s[80:81]')
    if calw:
        stamp(0)
    a(f'''s_load_dwordx16 s[4:19], s[0:1], 0
    s_load_dwordx2 s[20:21], s[0:1], 64
    v_readfirstlane_b32 s59, v0
    v_and_b32 v2, 63, v0             ; lane
    s_cmpk_ge_u32 s2, 256
    s_cbranch_scc1 END
    s_lshr_b32 s59, s59, 6
    s_cbranch_scc0 AUX
    v_lshrrev_b32 v3, 4, v2          ; kg
    v_and_b32 v4, 15, v2             ; n / m
    s_sub_u32 s3, s2, 18
    s_cmpk_ge_u32 s2, 72
    s_cbranch_scc1 NOT_X
    s_lshr_b32 s22, s2, 3
    s_and_b32 s23, s2, 6
    s_cbranch_scc0 ROLE_X
    s_lshl1_add_u32 s3, s22, 2
    s_sub_u32 s3, s2, s3
NOT_X:
    s_cmpk_lt_u32 s3, 144
    s_cbranch_scc1 ROLE_A
    s_cmpk_ge_u32 s3, 234
    s_cbranch_scc1 ROLE_L
    s_sub_u32 s3, s3, 144
    s_mul_hi_u32 s64, s3, {-(-(1<<32)//10)}     ; quad
    s_mul_i32 s60, s64, 10
    s_sub_u32 s60, s3, s60           ; i
    s_lshl1_add_u32 s64, s64, 1
    s_and_b32 s66, s60, 8
    s_add_u32 s66, s66, s60          ; slot: i < 8 ? i : i + 8
    s_mul_i32 s65, s60, 7
    s_add_u32 s65, s65, s59
    s_sub_u32 s65, s65, 1            ; r = 7i + (w-1)
    s_sub_u32 s67, s59, 1
    s_mov_b32 s74, 5
    s_mov_b64 vcc, -1''')
    if stamps:
        a('s_mov_b32 s94, 5')
    a.label('V_ENTRY')
    vm = VM(a)
    RING = 16
    NR = D + 2
    assert RING + 4 * NR <= 56
    P = 56
    TW = 10
    T = 64
    AB = [192, 208]
    ACC = 224
    OUT = 232
    TB = 240
    a(f'''s_lshr_b32 s42, s65, 1           ; kb
    s_and_b32 s43, s65, 1
    s_lshl1_add_u32 s43, s64, s43    ; cgp
    v_mul_u32_u24 v8, {8*VROW}, v3
    v_lshl_add_u32 v8, v4, 4, v8     ; V voffset
    s_mul_i32 s44, s42, {128*VROW}
    s_lshl_b32 s45, s43, 8
    s_add_u32 s44, s44, s45          ; V soffset
    s_movk_i32 s45, {VROW}''')
    srd_hi(a, 24, 4608 * 4608 * 2)
    a('s_waitcnt lgkmcnt(0)')
    if fdelay:
        a(f's_sleep {fdelay}')
    srd_lo(a, 24, 14)
    if calw:
        stamp(7)
    state = {'row': 0}
    def vload(k):
        s, i = divmod(k, 8)
        row = 32 * s + i
        if row == state['row'] + 1:
            a('s_add_u32 s44, s44, s45')
        elif row != state['row']:
            a(f's_add_u32 s44, s44, {(row - state["row"]) * VROW}')
        state['row'] = row
        r = RING + 4 * (k % NR)
        if Dlow < D and k - Dlow >= 0 and f'L{k-Dlow}' in vm.q:
            n = len(vm.q) - 1 - vm.q.index(f'L{k-Dlow}')
            if k >= K0:
                a(f's_cbranch_vccz VD{k}')
            a(f's_waitcnt vmcnt({n})')
            a.label(f'VD{k}')
        vm.issue(f'L{k}', f'buffer_load_dwordx4 v[{r}:{r+3}], v8, s[24:27], s44 offen {vflags}')
    nxt = 0
    while nxt < min(D, Dlow):
        vload(nxt)
        nxt += 1
    a('s_branch V_MAIN')

    a.label('AUX')
    a(f'''s_getpc_b64 s[64:65]
PC0:
    s_mov_b32 s66, CODE_END-PC0
    s_mov_b32 s67, 0x00020000
    v_lshlrev_b32 v1, 7, v2
    s_movk_i32 s42, 8192
    buffer_load_dword v4, v1, s[64:67], 0 offen offset:512
    buffer_load_dword v5, v1, s[64:67], s42 offen offset:512
    s_lshr_b32 s42, s2, 3
    s_and_b32 s43, s2, 6
    s_cbranch_scc1 AUXQ
    ; XCD 0 hosts column blocks 0..4, XCD 1 blocks 4..8 ; 18 rows x 5 blocks by this wave
    s_mul_i32 s42, s42, {18*1152}
    s_and_b32 s43, s2, 1
    s_lshl_b32 s43, s43, 9
    s_add_u32 s42, s42, s43
    v_mul_u32_u24 v3, 13, v2
    v_lshrrev_b32 v3, 6, v3          ; l / 5 (l < 64)
    v_mul_u32_u24 v6, {1152-640}, v3
    v_lshl_add_u32 v3, v2, 7, v6     ; row*1152 + (l - 5 row)*128
    s_mov_b32 s44, -1
    s_movk_i32 s45, 0x1fff           ; 45 lanes = 9 rows''')
    srd_hi(a, 24, 576 * 576 * 2)
    a('''s_movk_i32 s66, 4608
    s_mov_b64 exec, s[44:45]
    s_add_u32 s43, s42, 10368
    s_waitcnt lgkmcnt(0)''')
    srd_lo(a, 24, 12)
    srd_lo(a, 64, 4)
    a(f'''buffer_load_dword v7, v1, s[64:67], 0 offen {uflags}
    buffer_load_dword v8, v3, s[24:27], s42 offen {uflags}
    buffer_load_dword v9, v3, s[24:27], s43 offen {uflags}
    s_barrier
    s_endpgm
AUXQ:
    ; slow strips (x-2) + 6k, k = l % 3 ; row = 18*(id>>3) + l / 3
    v_mul_u32_u24 v6, 6144, v2       ; l*6144 = row*18432 + k*6144
    s_mul_i32 s42, s42, {18*QROW}
    s_and_b32 s43, s2, 7
    s_lshl_b32 s43, s43, 10
    s_add_u32 s42, s42, s43
    s_sub_u32 s42, s42, {2048-384}
    s_mov_b32 s66, {576*4608*4}
    s_mov_b32 exec_hi, 0x3fffff
    s_waitcnt lgkmcnt(0)
    s_mov_b64 s[64:65], s[6:7]
    buffer_load_dword v7, v6, s[64:67], s42 offen {qflags}
    s_cmpk_eq_u32 s2, 255
    s_cbranch_scc1 AUX2
    s_barrier
    s_endpgm''')

    a.label('ROLE_X')
    UB = 16; TT = 48; XACC = 80
    a(f'''s_cmp_eq_u32 s59, 7
    s_cbranch_scc1 END
    s_sub_u32 s60, s59, 1            ; xw 0..5
    v_lshrrev_b32 v5, 2, v4          ; c (also c')
    v_min_u32 v6, 2, v5
    v_and_b32 v7, 3, v4              ; n' (also b)
    v_lshlrev_b32 v8, 5, v6
    v_lshl_add_u32 v8, v3, 3, v8     ; 32c + 8kg
    v_mul_u32_u24 v9, 1152, v8
    v_lshl_add_u32 v9, v7, 4, v9     ; U voffset
    s_and_b32 s23, s2, 1
    s_mul_i32 s3, s23, 9
    s_add_u32 s3, s3, s22            ; strip
    s_lshl_b32 s44, s3, 6
    s_mul_i32 s45, s60, {96*1152}
    s_add_u32 s44, s44, s45
    s_add_u32 s47, s44, 4608
    v_mul_u32_u24 v10, 1152, v7
    v_lshl_add_u32 v10, v8, 1, v10   ; x voffset
    s_mul_i32 s45, s60, 192''')
    srd_hi(a, 24, 576 * 576 * 2)
    srd_hi(a, 32, 4 * 576 * 2)
    a('s_waitcnt lgkmcnt(0)')
    srd_lo(a, 24, 12)
    srd_lo(a, 32, 4)
    for i in range(8):
        a(f'buffer_load_dwordx4 v[{UB+4*i}:{UB+4*i+3}], v9, s[24:27], s{44 if i < 4 else 47} offen offset:{(i%4)*1152} {uflags}')
    a('buffer_load_dwordx4 v[12:15], v10, s[32:35], s45 offen')
    a('s_branch X_MAIN')

    a.label('ROLE_A')
    a(f'''s_sub_u32 s22, s3, 14            ; fi + 4
    s_mul_hi_u32 s23, s22, {-(-(1<<32)//7)}
    s_add_u32 s22, s22, s23
    s_sub_u32 s22, s22, 4
    s_lshl3_add_u32 s23, s3, 3
    s_cmp_lt_u32 s3, 18
    s_cselect_b32 s3, s23, s22
    s_cmp_ge_u32 s59, 4
    s_cbranch_scc1 A_V''')
    hm = VM(a)
    Q = 32; SZ = 16; SC = 128; W = 144; HACC = 192; HP = 208; AOP = 224
    a(f'''s_setprio 3
    s_sub_u32 s60, s59, 1            ; hw
    v_lshrrev_b32 v5, 3, v4          ; c
    v_and_b32 v6, 7, v4              ; n'
    v_lshlrev_b32 v7, 2, v5
    v_add_u32 v7, v7, v3             ; 4c + kg
    v_mul_u32_u24 v7, {8*QROW}, v7
    v_lshl_add_u32 v7, v6, 4, v7
    s_mul_i32 s44, s60, {192*QROW}
    s_lshl_b32 s45, s3, 7
    s_add_u32 s44, s44, s45
    s_movk_i32 s45, {QROW}''')
    srd_hi(a, 24, 576 * 4608 * 4)
    a('s_waitcnt lgkmcnt(0)')
    if fdelay:
        a(f's_sleep {fdelay}')
    srd_lo(a, 24, 6)
    def qload(k):
        s, i = divmod(k, 8)
        r = Q + 32 * s + 4 * i
        hm.issue(f'Q{s}_{i}', f'buffer_load_dwordx4 v[{r}:{r+3}], v7, s[24:27], s44 offen {qflags}')
        if i < 7:
            a('s_add_u32 s44, s44, s45')
        elif s < 2:
            a(f's_add_u32 s44, s44, {57*QROW}')
    for k in range(hfirst):
        qload(k)
    a.label('FIRST_KB_END')
    a(f'''s_load_dword s62, s[20:21], 0    ; epoch
    v_mul_u32_u24 v8, 9216, v5
    v_lshl_add_u32 v8, v6, 3, v8
    s_mul_i32 s46, s60, {6*9216}
    s_lshl_b32 s47, s3, 6
    s_add_u32 s46, s46, s47''')
    srd_lo(a, 32, 8); srd_hi(a, 32, 18 * 4608 * 2)
    srd_lo(a, 36, 10); srd_hi(a, 36, 18 * 4608 * 2)
    for s in range(3):
        hm.issue(f'S{s}', f'buffer_load_dwordx2 v[{SZ+4*s}:{SZ+4*s+1}], v8, s[32:35], s46 offen {sflags}')
        hm.issue(f'Z{s}', f'buffer_load_dwordx2 v[{SZ+4*s+2}:{SZ+4*s+3}], v8, s[36:39], s46 offen {sflags}')
        if s < 2:
            a('s_add_u32 s46, s46, s45')
    for k in range(hfirst, 24):
        qload(k)
    srd_lo(a, 28, 20); srd_hi(a, 28, WS_BYTES)
    srd_lo(a, 32, 16); srd_hi(a, 32, 4 * 4608 * 2)
    a(f'''s_mov_b32 s46, {SPIN}
    v_and_b32 v9, 3, v4              ; b
    v_mul_u32_u24 v9, 2304, v9
    v_lshl_add_u32 v9, v3, 5, v9     ; + 8kg*4
    v_lshrrev_b32 v10, 2, v4         ; ch
    v_and_b32 v11, 1, v10
    v_lshl_add_u32 v11, v11, 7, v9
    v_lshl_add_u32 v9, v10, 7, v9
    s_mul_i32 s47, s60, 768
    s_add_u32 s47, s47, {XG}
    v_lshlrev_b32 v12, 10, v5
    v_lshl_add_u32 v12, v6, 4, v12
    s_lshl_b32 s58, s60, 11
    v_add_u32 v12, s58, v12
    v_and_b32 v13, 1, v2
    v_lshlrev_b32 v13, 9, v13
    v_bfe_u32 v14, v2, 1, 3
    v_lshl_add_u32 v13, v14, 4, v13
    v_lshl_add_u32 v13, v3, 2, v13
    v_mul_u32_u24 v14, 18432, v3
    v_lshl_add_u32 v14, v4, 3, v14
    s_lshl_b32 s58, s3, 7
    s_add_u32 s58, s58, {HG}
    s_lshl_b32 s61, s60, 2
    v_mov_b32 v15, s61''')
    zero_flags()
    a('s_waitcnt lgkmcnt(0)')
    mktag(62)
    def hpoll(track=True):
        ops = [('P0', f'buffer_load_dwordx4 v[{HP}:{HP+3}], v9, s[28:31], s47 offen sc1'),
               ('P1', f'buffer_load_dwordx4 v[{HP+4}:{HP+7}], v9, s[28:31], s47 offen offset:16 sc1'),
               ('P2', f'buffer_load_dwordx4 v[{HP+8}:{HP+11}], v11, s[28:31], s47 offen offset:512 sc1'),
               ('P3', f'buffer_load_dwordx4 v[{HP+12}:{HP+15}], v11, s[28:31], s47 offen offset:528 sc1')]
        for n, t in ops:
            if track:
                hm.issue(n, t)
            else:
                a(t)
    def hevents(pi):
        if pi == hp:
            hpoll()
        if pi == hb:
            a('s_barrier')
    for s in range(3):
        hm.wait(f'Z{s}')
        sreg = SZ + 4 * s
        zreg = SZ + 4 * s + 2
        for j in range(4):
            if j % 2 == 0:
                a(f'v_lshlrev_b32 v{SC+j}, 16, v{sreg+j//2}')
                a(f'v_lshlrev_b32 v{SC+4+j}, 16, v{zreg+j//2}')
            else:
                a(f'v_and_b32 v{SC+j}, 0xffff0000, v{sreg+j//2}')
                a(f'v_and_b32 v{SC+4+j}, 0xffff0000, v{zreg+j//2}')
            a(f'v_mul_f32 v{SC+4+j}, v{SC+4+j}, v{SC+j}')
        for p in range(4):
            hevents(4 * s + p)
            hm.wait(f'Q{s}_{2*p+1}')
            for i in (2 * p, 2 * p + 1):
                for j in range(4):
                    r = Q + 32 * s + 4 * i + j
                    a(f'v_cvt_f32_i32 v{r}, v{r}')
                for j in range(4):
                    r = Q + 32 * s + 4 * i + j
                    a(f'v_fma_f32 v{r}, v{r}, v{SC+j}, -v{SC+4+j}')
            for j in range(4):
                a(f'v_cvt_pk_bf16_f32 v{W+16*s+4*j+p}, v{Q+32*s+4*(2*p)+j}, v{Q+32*s+4*(2*p+1)+j}')
    hevents(12)
    stamp(1)
    hm.wait('P3')
    htags = [HP + 1 + 2 * i for i in range(8)]
    tagcheck(htags, 's62')
    if not nodep:
        a('s_cbranch_scc1 H_RETRY')
    a.label('H_GOT')
    stamp(2)
    for k, src in enumerate([HP, HP+2, HP+4, HP+6]):
        a(f'v_mov_b32 v{AOP+k}, v{src}')
        a(f'v_mov_b32_dpp v{AOP+4+k}, v{src} row_shl:8 row_mask:0xf bank_mask:0xf bound_ctrl:0')
        a(f'v_mov_b32 v{AOP+8+k}, v{src+8}')
    a('s_nop 1')
    for s in range(3):
        for j in range(4):
            c = '0' if s == 0 else f'v[{HACC+4*j}:{HACC+4*j+3}]'
            a(f'v_mfma_f32_16x16x32_bf16 v[{HACC+4*j}:{HACC+4*j+3}], v[{AOP+4*s}:{AOP+4*s+3}], v[{W+16*s+4*j}:{W+16*s+4*j+3}], {c}')
    a('''s_mov_b32 s48, 0xff0000ff
    s_mov_b32 s49, 0
    v_mov_b32 v16, 1
    s_mov_b64 exec, s[48:49]
    s_nop 4''')
    for j in range(4):
        a(f'ds_write_b128 v12, v[{HACC+4*j}:{HACC+4*j+3}] offset:{256*j}')
    a(f'''s_mov_b64 exec, -1
    v_mov_b32 v17, {FL}
    s_cmp_lg_u32 s60, 0
    s_cbranch_scc1 REDUCER''')
    a.label('H_SPIN')
    a('''ds_read2_b32 v[18:19], v17 offset0:9 offset1:10
    s_waitcnt lgkmcnt(0)
    v_and_b32 v18, v18, v19
    v_cmp_ne_u32 vcc, 1, v18
    s_cbranch_vccz H_RDY
    s_sub_u32 s46, s46, 1
    s_cmp_lg_u32 s46, 0
    s_cbranch_scc1 H_SPIN''')
    a.label('H_RDY')
    stamp(3)
    for p in range(6):
        a(f'ds_read2st64_b32 v[{20+2*p}:{21+2*p}], v13 offset0:{4*p} offset1:{4*p+1}')
    a('s_waitcnt lgkmcnt(0)')
    for p in range(1, 6):
        a(f'v_add_f32 v20, v20, v{20+2*p}')
        a(f'v_add_f32 v21, v21, v{21+2*p}')
    a('''v_cvt_pk_bf16_f32 v20, v20, v21
    v_mov_b32 v21, s62
    buffer_store_dwordx2 v[20:21], v14, s[28:31], s58 offen sc1''')
    stamp(4)
    if stamps and not lite:
        a('s_waitcnt vmcnt(0)')
    stamp(5); stamp(6)
    stamp_store(2)
    a.label('H_RETRY')
    a('s_sleep 1')
    hpoll(False)
    a('s_waitcnt vmcnt(0)')
    tagcheck(htags, 's62')
    a('''s_cbranch_scc0 H_GOT
    s_sub_u32 s46, s46, 1
    s_cmp_lg_u32 s46, 0
    s_cbranch_scc1 H_RETRY
    s_branch H_GOT''')

    a.label('REDUCER')
    R = 32; RT = 24
    a(f'''ds_write_b32 v15, v16 offset:{FL+32}
    s_setprio 0
    s_lshr_b32 s42, s3, 4
    s_lshl1_add_u32 s42, s42, s60
    s_sub_u32 s42, s42, 1
    s_and_b32 s43, s3, 1
    s_lshl1_add_u32 s42, s42, s43
    s_bfe_u32 s43, s3, 0x30001
    s_mul_i32 s68, s42, {CG}
    s_lshl_b32 s70, s43, 8
    s_add_u32 s68, s68, s70
    s_add_u32 s68, s68, {YG}
    v_lshlrev_b32 v14, 11, v3
    v_lshl_add_u32 v14, v4, 4, v14   ; pg*2048 + n*16
    v_mul_u32_u24 v15, 9216, v3
    v_lshl_add_u32 v15, v4, 4, v15
    s_lshl_b32 s72, s42, 8
    s_lshl1_add_u32 s72, s43, s72
    s_cmp_eq_u32 s60, 2
    s_cselect_b32 s75, 0xffff, 0
    s_cselect_b32 s73, 19, 31
    s_and_b32 s70, s62, 0xff
    v_mov_b32 v{RT}, s70
    s_bfe_u32 s70, s62, 0x80008
    v_mov_b32 v{RT+1}, s70
    s_bfe_u32 s70, s62, 0x80010
    v_mov_b32 v{RT+2}, s70
    s_lshr_b32 s70, s62, 24
    v_mov_b32 v{RT+3}, s70''')
    for k in range(12):
        a(f'v_mov_b32 v{R+8+k}, v{RT+k%4}')
    stamp(3)
    if notail:
        stamp(6)
        stamp_store(3)
    a.label('R_WAIT')
    a(f'''s_sleep {rsleep}
    ds_read_b32 v18, v17
    s_waitcnt lgkmcnt(0)
    v_cmp_ne_u32 vcc, 1, v18
    s_cbranch_vccz R_POLL
    s_sub_u32 s46, s46, 1
    s_cmp_lg_u32 s46, 0
    s_cbranch_scc1 R_WAIT''')
    a.label('R_POLL')
    for q in range(5):
        a(f'''s_bitcmp1_b32 s73, {q}
        s_cbranch_scc0 R_S{q}
        s_add_u32 s70, s68, {q*8192}''')
        if q == 4:
            a('s_mov_b32 exec_hi, s75')
        a(f'buffer_load_dwordx4 v[{R+4*q}:{R+4*q+3}], v14, s[28:31], s70 offen sc1')
        if q == 4:
            a('s_mov_b32 exec_hi, -1')
        a.label(f'R_S{q}')
    a('s_mov_b32 s73, 0')
    a('s_waitcnt vmcnt(0)')
    for q in range(5):
        a(f'''v_xor_b32 v16, v{R+4*q}, v{RT}
        v_bitop3_b32 v16, v16, v{R+4*q+1}, v{RT+1} bitop3:0xf6
        v_bitop3_b32 v16, v16, v{R+4*q+2}, v{RT+2} bitop3:0xf6
        v_bitop3_b32 v16, v16, v{R+4*q+3}, v{RT+3} bitop3:0xf6
        v_and_b32 v16, 0xff, v16
        v_cmp_ne_u32 vcc, 0, v16
        s_cmp_lg_u64 vcc, 0
        s_cselect_b32 s70, {1<<q}, 0
        s_or_b32 s73, s73, s70''')
    if nodep:
        a('s_branch R_OK')
    a(f'''s_cbranch_scc0 R_OK
    s_sub_u32 s46, s46, 1
    s_cmp_lg_u32 s46, 0
    s_cbranch_scc1 R_POLL''')
    a.label('R_OK')
    stamp(5)
    for q in range(5):
        for k in range(4):
            a(f'v_xor_b32 v{R+4*q+k}, v{R+4*q+k}, v{RT+k}')
    for k in range(4):
        a(f'v_add_f32 v{R+k}, v{R+k}, v{R+4+k}')
        a(f'v_add_f32 v{R+8+k}, v{R+8+k}, v{R+12+k}')
    for k in range(4):
        a(f'v_add_f32 v{R+k}, v{R+k}, v{R+16+k}')
    for k in range(4):
        a(f'v_add_f32 v{R+k}, v{R+k}, v{R+8+k}')
    a(f'''s_nop 1
    v_permlane16_swap_b32 v{R}, v{R+1}
    v_permlane16_swap_b32 v{R+2}, v{R+3}
    s_nop 1
    v_add_f32 v{R}, v{R}, v{R+1}
    v_add_f32 v{R+2}, v{R+2}, v{R+3}
    s_nop 1
    v_permlane32_swap_b32 v{R}, v{R+2}
    s_nop 1
    v_add_f32 v{R}, v{R}, v{R+2}
    v_cvt_pk_bf16_f32 v{R}, v{R}, v{R}
    buffer_store_short v{R}, v15, s[32:35], s72 offen {outflags}
    s_cmp_lg_u32 s72, 0
    s_cbranch_scc1 R_FIN
    s_mov_b64 exec, 1
    v_mov_b32 v16, s62
    v_mov_b32 v17, 0
    buffer_store_dword v16, v17, s[28:31], 0 offen sc1''')
    a.label('R_FIN')
    stamp(6)
    stamp_store(3)

    a.label('V_MAIN')
    def poll_issue(track=True):
        ops = [('PT', f'buffer_load_dwordx2 v[{TW}:{TW+1}], v12, s[36:39], 0 offen sc1'),
               ('P0', f'buffer_load_dwordx4 v[{P}:{P+3}], v9, s[28:31], s47 offen sc1'),
               ('P1', f'buffer_load_dwordx4 v[{P+4}:{P+7}], v9, s[28:31], s47 offen offset:16 sc1')]
        for n, t in ops:
            if track:
                vm.issue(n, t)
            else:
                a(t)
    def perms(q):
        s, p = divmod(q, 4)
        r0 = RING + 4 * ((2 * q) % NR)
        r1 = RING + 4 * ((2 * q + 1) % NR)
        for d in range(4):
            a(f'v_perm_b32 v{T+32*s+4*(2*d)+p}, v{r1+d}, v{r0+d}, s40')
            a(f'v_perm_b32 v{T+32*s+4*(2*d+1)+p}, v{r1+d}, v{r0+d}, s41')
    def abuild(s, buf):
        for g in range(4):
            if s > g:
                m = f'row_shl:{4*(s-g)}'
            elif s < g:
                m = f'row_shr:{4*(g-s)}'
            else:
                m = 'quad_perm:[0,1,2,3]'
            for k, src in enumerate([P, P+2, P+4, P+6]):
                a(f'v_mov_b32_dpp v{buf+4*g+k}, v{src} {m} row_mask:0xf bank_mask:{1<<g:#x}')
    def mfmas(s, buf):
        for j in [0, 4, 1, 5, 2, 6, 3, 7]:
            ac = ACC + 4 * (j >> 2)
            g = j & 3
            c = '0' if (s == 0 and g == 0) else f'v[{ac}:{ac+3}]'
            a(f'v_mfma_f32_16x16x32_bf16 v[{ac}:{ac+3}], v[{buf+4*g}:{buf+4*g+3}], v[{T+32*s+4*j}:{T+32*s+4*j+3}], {c}')
    a('s_cbranch_vccz V_NOBAR')
    zero_flags()
    a('''s_waitcnt lgkmcnt(0)
    s_barrier''')
    a.label('V_NOBAR')
    srd_lo(a, 28, 20); srd_hi(a, 28, WS_BYTES)
    srd_lo(a, 36, 18); srd_hi(a, 36, 256)
    a(f'''s_mov_b32 s40, 0x05040100
    s_mov_b32 s41, 0x07060302
    s_mov_b32 s46, {SPIN}
    v_and_b32 v9, 3, v4              ; b
    v_mul_u32_u24 v9, 18432, v9
    v_lshrrev_b32 v12, 2, v4         ; s'
    v_lshl_add_u32 v9, v12, 7, v9
    v_lshl_add_u32 v9, v3, 5, v9
    v_mov_b32 v12, 0
    s_lshl_b32 s47, s42, 9
    s_add_u32 s47, s47, {HG}
    v_lshlrev_b32 v13, 4, v2
    s_mul_i32 s69, s43, 20
    s_add_u32 s69, s69, s66
    s_lshl_b32 s69, s69, 11
    s_add_u32 s69, s69, {YG}
    s_movk_i32 s71, 0xff
    s_lshl_b32 s70, s67, 11
    v_add_u32 v14, s70, v13
    s_and_b32 s70, s67, 1
    s_lshl_b32 s70, s70, 4
    s_lshr_b32 s72, s67, 1
    v_mov_b32 v15, s70''')
    for r in range(32):
        a(f'v_mov_b32 v{AB[0]+r}, 0')
    landed = -1
    pq = 0
    def do_perms():
        nonlocal pq
        while 2 * pq + 1 <= landed:
            perms(pq)
            pq += 1
    while nxt < 32:
        need = nxt - D
        if need > landed:
            vm.wait(f'L{need}')
            landed = need
        while nxt < 32 and nxt - D <= landed and (nxt - NR < 0 or (nxt - NR) // 2 < pq):
            if nxt == ppos:
                poll_issue()
            vload(nxt)
            nxt += 1
        do_perms()
    if ppos >= 32:
        poll_issue()
    stamp(1)
    while 2 * pq + 1 < min(ppos, 32):
        vm.wait(f'L{2*pq+1}')
        landed = 2 * pq + 1
        do_perms()
    vm.wait('P1')
    landed = max(landed, min(ppos, 32) - 1)
    tagcheck([P+1, P+3, P+5, P+7], f'v{TW}', f'v_cmp_ne_u32 vcc, 1, v{TW+1}')
    if not nodep:
        a('s_cbranch_scc1 V_RETRY')
    a.label('V_GOT')
    stamp(2)
    assert pq // 4 >= 3
    for s in range(3):
        abuild(s, AB[0])
        a('s_nop 1')
        mfmas(s, AB[0])
    abuild(3, AB[1])
    a(f'''v_mov_b32 v{TB}, v{TW}
    v_lshrrev_b32 v{TB+1}, 8, v{TW}
    v_lshrrev_b32 v{TB+2}, 16, v{TW}
    v_lshrrev_b32 v{TB+3}, 24, v{TW}''')
    while pq < 16:
        vm.wait(f'L{2*pq+1}')
        landed = 2 * pq + 1
        do_perms()
    stamp(3)
    a('s_nop 1')
    mfmas(3, AB[1])
    if notail == 1:
        a('s_branch V_FIN')
    a(f'''s_cmp_ge_u32 s67, s74
    s_cbranch_scc1 V_DES
    s_lshl_b32 s72, s72, 2
    v_add_u32 v15, s72, v15
    v_mov_b32 v16, 1
    s_nop 2
    ds_write_b128 v14, v[{ACC}:{ACC+3}] offset:{VL}
    ds_write_b128 v14, v[{ACC+4}:{ACC+7}] offset:{VL+1024}
    ds_write_b32 v15, v16 offset:{FL}''')
    a.label('V_FIN')
    stamp(4); stamp(5); stamp(6)
    stamp_store(None)
    PR = T
    a.label('V_DES')
    a(f'''s_cmp_eq_u32 s72, 0
    s_cbranch_scc1 V_PUB0''')
    a.label('V_DRETRY')
    a(f'''ds_read_b128 v[16:19], v15 offset:{FL}
    ds_read_b128 v[{PR}:{PR+3}], v14 offset:{VL-4096}
    ds_read_b128 v[{PR+4}:{PR+7}], v14 offset:{VL-4096+1024}
    s_cmp_eq_u32 s72, 1
    s_cbranch_scc1 V_DWAIT
    ds_read_b128 v[{PR+8}:{PR+11}], v14 offset:{VL-8192}
    ds_read_b128 v[{PR+12}:{PR+15}], v14 offset:{VL-8192+1024}
    s_cmp_eq_u32 s72, 2
    s_cbranch_scc1 V_DWAIT
    ds_read_b128 v[{PR+16}:{PR+19}], v14 offset:{VL-12288}
    ds_read_b128 v[{PR+20}:{PR+23}], v14 offset:{VL-12288+1024}''')
    a.label('V_DWAIT')
    a(f'''s_waitcnt lgkmcnt(0)
    v_add3_u32 v16, v16, v17, v18
    v_cmp_ne_u32 vcc, s72, v16
    s_cbranch_vccz V_DOK
    s_sub_u32 s46, s46, 1
    s_cmp_lg_u32 s46, 0
    s_cbranch_scc1 V_DRETRY''')
    a.label('V_DOK')
    for pi in range(3):
        for k in range(8):
            a(f'v_add_f32 v{ACC+k}, v{ACC+k}, v{PR+8*pi+k}')
        if pi < 2:
            a(f'''s_cmp_eq_u32 s72, {pi+1}
            s_cbranch_scc1 V_PUB''')
    a('s_branch V_PUB')
    a.label('V_PUB0')
    a('s_nop 4')
    a.label('V_PUB')
    for k in range(4):
        a(f'v_bfi_b32 v{OUT+k}, s71, v{TB+k}, v{ACC+k}')
    a(f'buffer_store_dwordx4 v[{OUT}:{OUT+3}], v13, s[28:31], s69 offen sc1')
    for k in range(4):
        a(f'v_bfi_b32 v{OUT+4+k}, s71, v{TB+k}, v{ACC+4+k}')
    a(f'buffer_store_dwordx4 v[{OUT+4}:{OUT+7}], v13, s[28:31], s69 offen offset:1024 sc1')
    stamp(4)
    if stamps and not lite:
        a('s_waitcnt vmcnt(0)')
    stamp(5); stamp(6)
    if stamps:
        a('s_add_u32 s94, s94, 10')
    stamp_store(None)
    a.label('V_RETRY')
    a(f's_sleep {vsleep}')
    poll_issue(False)
    a('s_waitcnt vmcnt(0)')
    tagcheck([P+1, P+3, P+5, P+7], f'v{TW}', f'v_cmp_ne_u32 vcc, 1, v{TW+1}')
    a('''s_cbranch_scc0 V_GOT
    s_sub_u32 s46, s46, 1
    s_cmp_lg_u32 s46, 0
    s_cbranch_scc1 V_RETRY
    s_branch V_GOT''')

    a.label('A_V')
    a(f'''s_lshr_b32 s64, s3, 4
    s_lshl_b32 s64, s64, 1
    s_and_b32 s66, s3, 15            ; j = slot
    s_sub_u32 s67, s59, 4            ; local
    s_mov_b32 s74, 2
    s_lshl2_add_u32 s65, s66, s67
    s_add_u32 s65, s65, 8            ; r
    s_mov_b64 vcc, 0''')
    if stamps:
        a('s_mov_b32 s94, 4')
    a('''s_barrier
    s_branch V_ENTRY''')
    a.label('ROLE_L')
    a(f'''s_sub_u32 s3, s3, 234
    s_mul_i32 s64, s3, 5
    s_add_u32 s64, s64, s59
    s_sub_u32 s64, s64, 1            ; cp
    s_cmp_gt_u32 s59, 5
    s_cbranch_scc1 END
    s_cmp_ge_u32 s64, 18
    s_cbranch_scc1 END
    s_and_b32 s65, s64, 1
    s_add_u32 s65, s65, 70
    s_or_b32 s64, s64, 1
    s_mov_b32 s66, 18
    s_mov_b32 s67, 0
    s_mov_b32 s74, 0
    s_mov_b64 vcc, 0''')
    if stamps:
        a('s_mov_b32 s94, 7')
    a('s_branch V_ENTRY')

    a.label('X_MAIN')
    if lite:
        stamp(5, True)
    a('s_load_dword s62, s[20:21], 0    ; epoch')
    srd_lo(a, 28, 20); srd_hi(a, 28, WS_BYTES)
    a(f'''s_mov_b32 s40, 0x05040100
    s_mov_b32 s41, 0x07060302
    s_mul_i32 s45, s60, 3
    v_add_u32 v11, s45, v5
    v_lshlrev_b32 v11, 11, v11
    v_lshl_add_u32 v11, v7, 4, v11
    v_cmp_eq_u32 s[50:51], v3, v5
    v_cmp_gt_u32 vcc, 3, v5
    s_and_b64 s[50:51], s[50:51], vcc
    v_mul_u32_u24 v112, 576, v7
    v_lshl_add_u32 v112, v5, 4, v112
    v_lshl_add_u32 v112, v3, 2, v112
    v_mul_u32_u24 v113, 2304, v3
    v_lshl_add_u32 v113, v4, 3, v113
    s_lshl_b32 s58, s3, 7
    s_add_u32 s58, s58, {XG}
    s_lshl_b32 s64, s22, 1
    s_sub_u32 s67, s60, 1            ; local
    s_and_b32 s66, s2, 1
    s_lshl2_add_u32 s65, s66, s67    ; r
    s_add_u32 s66, s66, 16           ; slot
    s_mov_b32 s74, 2''')
    zero_flags()
    for p in range(4):
        a(f's_waitcnt vmcnt({7-2*p})')
        for d in range(4):
            a(f'v_perm_b32 v{TT+4*(2*d)+p}, v{UB+4*(2*p+1)+d}, v{UB+4*(2*p)+d}, s40')
            a(f'v_perm_b32 v{TT+4*(2*d+1)+p}, v{UB+4*(2*p+1)+d}, v{UB+4*(2*p)+d}, s41')
    a('s_waitcnt vmcnt(0)')
    stamp(1, True)
    a('s_nop 1')
    for j in range(8):
        a(f'v_mfma_f32_16x16x32_bf16 v[{XACC+4*j}:{XACC+4*j+3}], v[12:15], v[{TT+4*j}:{TT+4*j+3}], 0')
    a('''s_mov_b64 exec, s[50:51]
    s_nop 7''')
    for j in range(8):
        a(f'ds_write_b128 v11, v[{XACC+4*j}:{XACC+4*j+3}] offset:{256*j+64*(j>>1)}')
    if stamps:
        a('s_mov_b32 s94, 6')
    a(f'''s_mov_b64 exec, -1
    s_mov_b64 vcc, 0
    s_waitcnt lgkmcnt(0)''')
    if lite:
        stamp(2, True)
    a(f'''s_barrier''')
    if lite:
        stamp(4, True)
    a(f'''s_cmp_eq_u32 s60, 0
    s_cbranch_scc1 X_RED
    s_cmp_eq_u32 s60, 5
    s_cbranch_scc1 END
    s_barrier
    s_branch V_ENTRY''')
    a.label('X_RED')
    mktag(62)
    stamp(2)
    for p in range(18):
        a(f'ds_read2st64_b32 v[{16+2*p}:{17+2*p}], v112 offset0:{8*p} offset1:{8*p+1}')
        if p == 11:
            a('s_waitcnt lgkmcnt(6)')
    a('s_waitcnt lgkmcnt(0)')
    for p in range(1, 18):
        a(f'v_add_f32 v16, v16, v{16+2*p}')
        a(f'v_add_f32 v17, v17, v{17+2*p}')
    a('''v_cvt_pk_bf16_f32 v16, v16, v17
    v_mov_b32 v17, s62
    buffer_store_dwordx2 v[16:17], v113, s[28:31], s58 offen sc1
    s_barrier''')
    stamp(3)
    if stamps and not lite:
        a('s_waitcnt vmcnt(0)')
    stamp(4); stamp(5); stamp(6)
    stamp_store(1)

    a.label('AUX2')
    a('''s_waitcnt lgkmcnt(0)
    s_load_dword s62, s[20:21], 0''')
    srd_lo(a, 36, 18); srd_hi(a, 36, 256)
    a('''s_mov_b64 exec, 1
    v_mov_b32 v10, 0
    v_mov_b32 v13, 1
    s_waitcnt lgkmcnt(0)''')
    mktag(62)
    a('''v_mov_b32 v12, s62
    buffer_store_dwordx2 v[12:13], v10, s[36:39], 0 offen sc1''')
    a.label('END')
    a('s_endpgm')
    if stamps:
        a.label('STAMP_OUT')
        a(f'''s_mov_b32 s95, 0
        s_mov_b64 exec, 1
        s_mov_b64 s[76:77], s[20:21]
        s_mov_b32 s78, 0x10000000
        s_mov_b32 s79, 0x00020000
        s_lshl_b32 s75, s2, 3
        s_add_u32 s75, s75, s59
        s_lshl_b32 s75, s75, 6
        s_add_u32 s75, s75, {STAMP}
        v_mov_b32 v1, 0''')
        for i in range(4):
            a(f'''v_mov_b32 v{4+4*i}, s{80+4*i}
            v_mov_b32 v{5+4*i}, s{81+4*i}
            v_mov_b32 v{6+4*i}, s{82+4*i}
            v_mov_b32 v{7+4*i}, s{83+4*i}
            buffer_store_dwordx4 v[{4+4*i}:{7+4*i}], v1, s[76:79], s75 offen offset:{16*i}''')
        a('s_endpgm')
    if calw:
        a.label('CAL_END')
        a(f'''s_cmpk_lg_u32 s2, {calw[0]}
        s_cbranch_scc1 END
        s_cmp_lg_u32 s59, {calw[1]}
        s_cbranch_scc1 END''')
        a.label('CAL')
        a('''s_sleep 8
        s_memrealtime s[98:99]
        s_waitcnt lgkmcnt(0)
        s_sub_u32 s98, s98, s96
        s_cmpk_lt_u32 s98, 4000
        s_cbranch_scc1 CAL
        s_endpgm''')
    a.label('CODE_END')
    a.raw('.section .rodata,"a"')
    a.raw(kd(NAME, 256, 102, 256))
    return a.text()

if __name__ == '__main__':
    import argparse
    ap = argparse.ArgumentParser()
    ap.add_argument('out')
    for k, v in dict(D=8, Dlow=5, K0=0, ppos=27, hp=8, hb=8, vsleep=1, notail=0, rsleep=4, hfirst=12, fdelay=0).items():
        ap.add_argument('--' + k, type=int, default=v)
    for k in ['stamps', 'lite', 'nodep']:
        ap.add_argument('--' + k, action='store_true')
    ap.add_argument('--outflags', default='')
    ap.add_argument('--uflags', default='')
    ap.add_argument('--cal', default='')
    ap.add_argument('--vflags', default='nt')
    ap.add_argument('--qflags', default='nt')
    ap.add_argument('--sflags', default='')
    args = vars(ap.parse_args())
    out = args.pop('out')
    open(out, 'w').write(gen(**args))
```
